```python
import torch

def _softmax(x, axis=-1):
    return torch.softmax(x, dim=axis)
def _gelu(x):
    return torch.nn.functional.gelu(x, approximate="tanh")
def _silu(x):
    return torch.nn.functional.silu(x)
def _sigmoid(x):
    return torch.sigmoid(x)
def _layernorm(x, axis=-1, eps=1e-5):
    m = x.mean(dim=axis, keepdim=True)
    v = x.var(dim=axis, keepdim=True, unbiased=False)
    return (x - m) / torch.sqrt(v + eps)
def _scatter_add(tgt, idx, src, axis=0):
    return tgt.clone().index_add_(axis, idx, src)
def _segment_sum(src, seg, n):
    out = torch.zeros((n,) + src.shape[1:], dtype=src.dtype)
    return out.index_add_(0, seg, src)
def _pad(x, pw):
    flat = tuple(v for pair in reversed(pw) for v in pair)
    return torch.nn.functional.pad(x, flat)

kernel_name = 'interleave_layers__ssm_conv_s4d__dense_activation_mish__prompt'

def setup_inputs():

    _w = (lambda a: (lambda t: t.to(torch.bfloat16) if t.is_floating_point() else t)(torch.as_tensor(a)))
    def _A_setup():
        Bsz, L, D, N = 1, 2048, 512, 128
        return {
            "u": _w((lambda *s: torch.randn(*s, dtype=torch.bfloat16) * 0.05)(Bsz, L, D)),
            "log_A_real": _w((lambda *s: torch.randn(*s, dtype=torch.bfloat16) * 3.2)(D, N) * 0.5),
            "A_imag": _w((lambda *s: torch.randn(*s, dtype=torch.bfloat16) * 0.05)(D, N) * 3.14),
            "C_real": _w((lambda *s: torch.randn(*s, dtype=torch.bfloat16) * 0.05)(D, N) / N ** 0.5),
            "C_imag": _w((lambda *s: torch.randn(*s, dtype=torch.bfloat16) * 0.05)(D, N) / N ** 0.5),
            "log_dt": _w((lambda *s: torch.randn(*s, dtype=torch.bfloat16) * 0.05)(D) * 0.5 - 4.0),
            "D_skip": _w((lambda *s: torch.randn(*s, dtype=torch.bfloat16) * 0.05)(D)),
        }
    _A_in = _A_setup()

    def _B_setup():
        B, S, D, F = 1, 2048, 512, 1792
        return {
            "x": _w((lambda *s: torch.randn(*s, dtype=torch.bfloat16) * 0.05)(B, S, D)),
            "w1": _w((lambda *s: torch.randn(*s, dtype=torch.bfloat16) * 0.8)(D, F) * (D ** -0.5)),
            "b1": _w((lambda *s: torch.randn(*s, dtype=torch.bfloat16) * 0.2)(F)),
            "w2": _w((lambda *s: torch.randn(*s, dtype=torch.bfloat16) * 0.2)(F, D) * (F ** -0.5)),
        }
    _B_in = _B_setup()

    return {
        "A_u": _A_in["u"],
        "A_log_A_real": _A_in["log_A_real"],
        "A_A_imag": _A_in["A_imag"],
        "A_C_real": _A_in["C_real"],
        "A_C_imag": _A_in["C_imag"],
        "A_log_dt": _A_in["log_dt"],
        "A_D_skip": _A_in["D_skip"],
        "B_x": _B_in["x"],
        "B_w1": _B_in["w1"],
        "B_b1": _B_in["b1"],
        "B_w2": _B_in["w2"],
    }

def reference(A_u, A_log_A_real, A_A_imag, A_C_real, A_C_imag, A_log_dt, A_D_skip, B_x, B_w1, B_b1, B_w2):
    def _A_ref(u, log_A_real, A_imag, C_real, C_imag, log_dt, D_skip):
        L = u.shape[1]
        dt = torch.exp(log_dt)
        A = -torch.exp(log_A_real) + 1j * A_imag
        C = (C_real + 1j * C_imag) * dt[:, None]
        pos = (lambda x, dt: x.to(dt))(torch.arange(L), log_dt.dtype)
        P = torch.exp((A * dt[:, None])[:, :, None] * pos[None, None, :])
        K = 2.0 * torch.einsum("dn,dnl->dl", C, P).real
        L2 = 2 * L
        u_t = (lambda x, *d: x.permute(*d))(u, 0, 2, 1)
        Kf = (lambda x, *a, **k: torch.fft.rfft(x.float(), *a, **k))(K, L2)
        Uf = (lambda x, *a, **k: torch.fft.rfft(x.float(), *a, **k))(u_t, L2)
        y = (lambda x, *a, **k: torch.fft.irfft(x, *a, **k).to(torch.bfloat16))(Uf * Kf[None, :, :], L2)[:, :, :L]
        y = (lambda x, *d: x.permute(*d))(y, 0, 2, 1)
        return y + u * D_skip[None, None, :]

    def _B_ref(x, w1, b1, w2):
        h = torch.einsum("bsd,df->bsf", x, w1) + b1
        sp = torch.log1p(torch.exp(-torch.abs(h))) + torch.where(h > 0, h, torch.zeros_like(h))
        act = h * torch.tanh(sp)
        return torch.einsum("bsf,fd->bsd", act, w2)

    x = A_u
    x = x + _A_ref(_layernorm(x, axis=-1), A_log_A_real, A_A_imag, A_C_real, A_C_imag, A_log_dt, A_D_skip)
    x = x + _B_ref(_layernorm(x, axis=-1), B_w1, B_b1, B_w2)
    x = x + _A_ref(_layernorm(x, axis=-1), A_log_A_real, A_A_imag, A_C_real, A_C_imag, A_log_dt, A_D_skip)
    x = x + _B_ref(_layernorm(x, axis=-1), B_w1, B_b1, B_w2)
    return x
```

```python
import re

TRANS = ("v_exp_f32", "v_log_f32", "v_rcp_f32", "v_rsq_f32", "v_sqrt_f32", "v_sin_f32", "v_cos_f32",
         "v_rcp_iflag_f32", "v_exp_f16", "v_log_f16", "v_rcp_f16", "v_rsq_f16", "v_sqrt_f16")

def regs_of(tok):
    tok = tok.strip()
    tok = tok.lstrip("-")
    m = re.match(r"^abs\((.*)\)$", tok) or re.match(r"^\|(.*)\|$", tok)
    if m: tok = m.group(1)
    m = re.match(r"^([vas])(\d+)$", tok)
    if m: return [(m.group(1), int(m.group(2)))]
    m = re.match(r"^([vas])\[(\d+):(\d+)\]$", tok)
    if m: return [(m.group(1), i) for i in range(int(m.group(2)), int(m.group(3)) + 1)]
    if tok == "vcc": return [("s", 106), ("s", 107)]
    if tok == "vcc_lo": return [("s", 106)]
    if tok == "vcc_hi": return [("s", 107)]
    if tok == "exec": return [("s", 126), ("s", 127)]
    if tok == "m0": return [("s", 124)]
    return []

def split_ops(s):
    ops = []; depth = 0; cur = ""
    for ch in s:
        if ch in "[(": depth += 1
        if ch in "])": depth -= 1
        if ch == "," and depth == 0:
            ops.append(cur.strip()); cur = ""
        else:
            cur += ch
    if cur.strip(): ops.append(cur.strip())
    if ops:
        last = ops[-1].split()
        mods = last[1:]
        ops[-1] = last[0]
    else:
        mods = []
    return ops, mods

class Ins:
    def __init__(self, text):
        self.text = text
        t = text.split(";")[0].strip()
        self.is_label = t.endswith(":")
        self.op = ""
        self.defs = []; self.uses = []
        self.kind = "other"
        self.srcC = []; self.srcAB = []
        self.passes = 0
        self.storedata = []
        self.mods = []
        if self.is_label or not t or t.startswith("."):
            self.kind = "label" if self.is_label else "dir"
            return
        parts = t.split(None, 1)
        op = parts[0]; self.op = op
        ops, mods = split_ops(parts[1]) if len(parts) > 1 else ([], [])
        self.mods = mods
        base = re.sub(r"_(e32|e64|dpp|sdwa)$", "", op)
        self.base = base
        R = [regs_of(o) for o in ops]
        flat = lambda L: [x for l in L for x in l]
        self.dpp = op.endswith("_dpp") or any(m.startswith(("row_", "quad_perm", "wave_")) for m in mods)
        if op.startswith("v_mfma"):
            self.kind = "mfma"
            self.defs = R[0]; self.srcAB = R[1] + R[2]; self.srcC = R[3]
            self.uses = self.srcAB + self.srcC
            if "32x32x16" in op or "32x32x8" in op: self.passes = 8
            elif "16x16x32" in op or "16x16x16" in op: self.passes = 4
            elif "32x32x2_f32" in op: self.passes = 16
            elif "16x16x4_f32" in op: self.passes = 8
            else: raise Exception("unknown mfma " + op)
        elif op.startswith("v_"):
            self.kind = "valu"
            self.trans = base in TRANS
            if base.startswith("v_cmp"):
                self.defs = R[0]; self.uses = flat(R[1:])
                if base.startswith("v_cmpx"): self.defs = self.defs + regs_of("exec")
            elif base in ("v_add_co_u32", "v_sub_co_u32", "v_subrev_co_u32", "v_addc_co_u32", "v_subb_co_u32", "v_mad_u64_u32", "v_div_scale_f32"):
                self.defs = R[0] + R[1]; self.uses = flat(R[2:])
            elif base.startswith("v_permlane") and "swap" in base:
                self.defs = R[0] + R[1]; self.uses = R[0] + R[1]
            elif base in ("v_fmac_f32", "v_dot2c_f32_bf16", "v_pk_fmac_f16", "v_dot2c_f32_f16", "v_writelane_b32"):
                self.defs = R[0]; self.uses = flat(R)
            elif base == "v_nop":
                pass
            else:
                self.defs = R[0]; self.uses = flat(R[1:])
                if self.dpp or op.endswith("_sdwa"): self.uses = self.uses + R[0]
                if base == "v_cndmask_b32" and len(ops) == 3: self.uses += regs_of("vcc")
        elif op.startswith(("buffer_", "global_", "flat_")):
            self.kind = "vmem"
            lds = ("lds" in mods) or ("_lds_" in op)
            self.lds = lds
            if op in ("buffer_wbl2", "buffer_inv"):
                pass
            elif lds:
                self.uses = flat(R) + regs_of("m0")
            elif "_load" in op:
                self.defs = R[0]; self.uses = flat(R[1:])
                if "d16" in op: self.uses += R[0]
            elif "_store" in op:
                self.uses = flat(R)
                d = R[0] if op.startswith("buffer_") else R[1]
                if len(d) >= 3: self.storedata = d
            elif "_atomic" in op:
                if "sc0" in mods:
                    self.defs = R[0]
                    self.uses = flat(R) if op.startswith("buffer_") else flat(R[1:])
                else:
                    self.uses = flat(R)
            else: raise Exception("unknown vmem " + op)
        elif op.startswith("ds_"):
            self.kind = "ds"
            if op.startswith(("ds_read", "ds_bpermute", "ds_permute", "ds_swizzle")) or "_rtn" in op:
                self.defs = R[0]; self.uses = flat(R[1:])
                if "d16" in op: self.uses += R[0]
            else:
                self.uses = flat(R)
        elif op.startswith("s_"):
            if op.startswith(("s_load", "s_buffer_load", "s_memtime", "s_memrealtime", "s_atomic")):
                self.kind = "smem"; self.defs = R[0]; self.uses = flat(R[1:])
            elif op in ("s_waitcnt", "s_nop", "s_barrier", "s_endpgm", "s_sleep", "s_setprio") or op.startswith(("s_cbranch", "s_branch")):
                self.kind = "sctl"
            else:
                self.kind = "salu"
                if op.startswith("s_cmp") or op.startswith("s_bitcmp"):
                    self.uses = flat(R)
                else:
                    self.defs = R[0]; self.uses = flat(R[1:])
                    if "saveexec" in op: self.defs = self.defs + regs_of("exec"); self.uses += regs_of("exec")
        else:
            raise Exception("unknown instruction: " + text)
    def states(self):
        if self.kind in ("label", "dir"): return 0
        if self.op == "s_nop":
            return int(self.text.split(";")[0].split()[1], 0) + 1
        return 1

def need(prod, cons):
    n = 0
    pd = set(prod.defs)
    vdefs = set(r for r in pd if r[0] in "va")
    sdefs = set(r for r in pd if r[0] == "s")
    cu = set(cons.uses); cd = set(cons.defs)
    EX = set(regs_of("exec"))
    if prod.kind == "valu":
        if sdefs:
            if cons.kind == "vmem" and (sdefs & cu): n = max(n, 5)
            if cons.kind in ("valu", "mfma") and (sdefs & cu):
                n = max(n, 4 if cons.base in ("v_readlane_b32", "v_writelane_b32", "v_div_fmas_f32") else 2)
            if (sdefs & EX):
                if cons.kind == "valu" and cons.dpp: n = max(n, 5)
                if cons.kind == "valu" and (cons.base.startswith(("v_readlane", "v_readfirstlane", "v_writelane", "v_permlane"))): n = max(n, 4)
                if cons.kind == "mfma": n = max(n, 4)
            if cons.kind in ("salu", "sctl", "smem") and (sdefs & cu): n = max(n, 1)
        if vdefs:
            if cons.kind == "valu" and (vdefs & cu):
                if cons.dpp: n = max(n, 2)
                if cons.base in ("v_readlane_b32", "v_readfirstlane_b32"): n = max(n, 1)
                if cons.base.startswith("v_permlane"): n = max(n, 2)
                if prod.trans and not cons.trans: n = max(n, 1)
                if prod.op.endswith("_sdwa") or any(m.startswith("op_sel") for m in prod.mods) and not prod.base.startswith("v_pk_"): n = max(n, 1)
                if prod.base.startswith("v_dot2") and not (cons.base == prod.base): n = max(n, 3)
                if prod.base.startswith("v_dot2") and cons.base == prod.base:
                    ab = set(cons.uses) - set(cons.defs)
                    if vdefs & ab: n = max(n, 3)
            if cons.kind == "valu" and prod.base.startswith("v_dot2") and cons.base != prod.base and (vdefs & cd): n = max(n, 3)
            if cons.kind in ("vmem", "ds") and prod.base.startswith("v_dot2") and (vdefs & cu): n = max(n, 3)
            if cons.kind in ("vmem", "ds") and prod.trans and (vdefs & cu): n = max(n, 1)
            if cons.kind == "mfma" and (vdefs & cu): n = max(n, 2 if not prod.base.startswith("v_dot2") else 3)
    if prod.kind == "salu":
        if (("s", 124) in sdefs) and cons.kind == "vmem" and getattr(cons, "lds", False): n = max(n, 1)
        if (("s", 124) in sdefs) and cons.kind == "ds" and "addtid" in cons.op: n = max(n, 1)
    if prod.kind == "vmem" and prod.storedata:
        if set(prod.storedata) & cd:
            n = max(n, 2)
    if prod.kind == "mfma":
        p = prod.passes
        idx = {2: 0, 4: 1, 8: 2, 16: 3}[p]
        if cons.kind == "mfma":
            if vdefs & set(cons.srcC):
                if cons.srcC == prod.defs and cons.passes == p: n = max(n, [2, 0, 0, 0][idx])
                else: n = max(n, [4, 6, 10, 18][idx])
            if vdefs & set(cons.srcAB): n = max(n, [5, 8, 12, 20][idx])
            if (vdefs & cd) and not (vdefs & set(cons.srcC)): n = max(n, [5, 8, 12, 20][idx])
        elif cons.kind in ("valu", "vmem", "ds"):
            if vdefs & (cu | cd): n = max(n, [5, 8, 12, 20][idx])
        if cons.kind in ("valu",) and (set(prod.srcC) & cd): n = max(n, [1, 3, 7, 15][idx])
    return n

class Asm:
    def __init__(self):
        self.lines = []
    def I(self, s):
        for l in s.strip().split("\n"):
            l = l.strip()
            if l: self.lines.append(l)
    def L(self, name):
        self.lines.append(name + ":")
    def C(self, s):
        self.lines.append("; " + s)
    def finalize(self):
        ins = []
        for l in self.lines:
            if l.startswith(";"):
                o = Ins(".c"); o.text = l; ins.append(o)
            else:
                ins.append(Ins(l))
        out = []
        W = 24
        labels = {}
        def required(hist, c):
            dist = 0; extra = 0
            for p in reversed(hist):
                if dist >= W: break
                if p.kind not in ("label", "dir"):
                    nd = need(p, c)
                    if nd > dist: extra = max(extra, nd - dist)
                dist += p.states()
            return extra
        for c in ins:
            if c.kind in ("label", "dir"):
                if c.kind == "label": labels[c.text.split(":")[0]] = len(out)
                out.append(c); continue
            e = required(out[-3 * W:], c)
            while e > 0:
                k = min(e, 16)
                out.append(Ins("s_nop %d" % (k - 1))); e -= k
            out.append(c)
        for i, c in enumerate(out):
            if c.op.startswith(("s_cbranch", "s_branch")):
                tgt = c.text.split(";")[0].split()[1]
                if tgt not in labels: raise Exception("unknown label " + tgt)
                hist = list(out[max(0, i - 3 * W): i + 1])
                j = labels[tgt]; d = 0
                while j < len(out) and d < W:
                    t = out[j]
                    if t.kind not in ("label", "dir"):
                        e = required(hist, t)
                        if e > 0:
                            raise Exception("hazard across branch %s -> %s needs %d more states" % (c.text, t.text, e))
                        d += t.states()
                        if t.op in ("s_branch", "s_endpgm"): break
                    hist.append(t); j += 1
        maxv = max([r[1] for c in out for r in c.defs + c.uses if r[0] == "v"] + [0])
        maxa = max([r[1] for c in out for r in c.defs + c.uses if r[0] == "a"] + [-1])
        maxs = max([r[1] for c in out for r in c.defs + c.uses if r[0] == "s" and r[1] < 102] + [0])
        return [c.text for c in out], maxv, maxa, maxs

def kernel_text(name, asm):
    lines, maxv, maxa, maxs = asm.finalize()
    acc = (maxv + 1 + 3) // 4 * 4
    nfv = acc + maxa + 1 if maxa >= 0 else maxv + 1
    body = ".globl %s\n.p2align 8\n.type %s,@function\n%s:\n" % (name, name, name)
    body += "\n".join(("  " + l if not l.endswith(":") else l) for l in lines) + "\n"
    desc = """.p2align 6
.amdhsa_kernel %s
  .amdhsa_next_free_vgpr %d
  .amdhsa_next_free_sgpr %d
  .amdhsa_accum_offset %d
  .amdhsa_group_segment_fixed_size 0
  .amdhsa_kernarg_size 112
  .amdhsa_user_sgpr_count 2
  .amdhsa_user_sgpr_kernarg_segment_ptr 1
  .amdhsa_system_sgpr_workgroup_id_x 1
.end_amdhsa_kernel
""" % (name, nfv, max(maxs + 1, 16), acc)
    return body, desc, dict(vgpr=maxv + 1, agpr=maxa + 1, sgpr=maxs + 1, n=len(lines))
```

```python
from asmlib import *
from layout import *
from k_p0 import load_kernargs, ws_base

CONV_GRID = 256
KSTR = 35072
UB = 0
USTR = 4608
YB = UB + 2 * USTR
KB0 = YB + 4 * 8192
CONV_LDS = KB0 + 2 * KSTR
CS = [9, 2, 3, 6, 7, 11, 14, 15]
CSPACK = sum(c << (4 * i) for i, c in enumerate(CS))

def bf_round_pair(a, x, y):
    a.I("v_cvt_pk_bf16_f32 v%d, v%d, v%d" % (x, x, y))
    a.I("v_and_b32 v%d, 0xffff0000, v%d" % (y, x))
    a.I("v_lshlrev_b32 v%d, 16, v%d" % (x, x))

def gen_conv(tag, XIN, STIN, XOUT):
    a = Asm()
    load_kernargs(a)
    a.I("v_lshrrev_b32 v1, 6, v0")
    a.I("v_and_b32 v2, 63, v0")
    a.I("v_readfirstlane_b32 s3, v1")
    a.I("s_cmp_ge_u32 s2, %d" % CONV_GRID)
    a.I("s_cbranch_scc1 %s_end" % tag)
    a.I("s_lshr_b32 s4, s3, 1")
    a.I("s_and_b32 s5, s3, 1")
    a.I("s_lshl_b32 s6, s2, 1")
    a.I("v_lshlrev_b32 v3, 4, v0")
    a.I("v_lshlrev_b32 v4, 6, v0")
    a.I("v_lshlrev_b32 v5, 4, v2")
    a.I("s_lshl_b32 s7, s6, 12")
    a.I("s_waitcnt lgkmcnt(0)")
    ws_base(a, 44, XIN, 7)
    ws_base(a, 46, STIN)
    ws_base(a, 52, XOUT, 7)
    for q in range(4):
        a.I("global_load_dwordx4 v[%d:%d], v4, s[46:47] offset:%d" % (8 + 4 * q, 11 + 4 * q, 16 * q))
    a.I("global_load_dwordx4 v[24:27], v3, s[44:45]")
    a.I("v_add_u32 v6, 4096, v3")
    a.I("global_load_dwordx4 v[28:31], v6, s[44:45]")
    a.I("s_lshl_b32 s8, s2, 2")
    a.I("s_load_dword s9, %s, s8" % sp(P_DSK))
    a.I("s_add_u32 s48, s%d, 0x%x" % (P_WS, KC))
    a.I("s_addc_u32 s49, s%d, 0" % (P_WS + 1))
    a.I("s_mov_b32 s50, 0x%x" % (512 * KC_CH))
    a.I("s_mov_b32 s51, 0x20000")
    a.I("s_add_u32 s10, s6, s4")
    a.I("s_mul_i32 s10, s10, %d" % KC_CH)
    a.I("s_mul_i32 s11, s4, %d" % KSTR)
    a.I("s_add_u32 s11, s11, %d" % KB0)
    a.I("s_mov_b32 s15, 0x%x" % CSPACK)
    for i in range(4):
        a.I("s_lshl_b32 s12, s5, 2")
        a.I("s_add_u32 s12, s12, %d" % i)
        a.I("s_lshl_b32 s13, s12, 2")
        a.I("s_lshr_b32 s13, s15, s13")
        a.I("s_and_b32 s13, s13, 15")
        a.I("s_mul_i32 s14, s12, 272")
        a.I("s_add_u32 s13, s13, s14")
        a.I("s_lshl_b32 s13, s13, 4")
        a.I("s_add_u32 m0, s13, s11")
        a.I("s_lshl_b32 s14, s5, 3")
        a.I("s_add_u32 s14, s14, s10")
        a.I("s_add_u32 s14, s14, %d" % (2 * (i & ~1) + (i & 1) * KC_COPY))
        for q in range(4):
            a.I("buffer_load_dwordx4 v5, s[48:51], s14 offen offset:%d lds" % (1024 * q))
    a.I("v_and_b32 v32, 7, v2")
    a.I("v_bfe_u32 v33, v2, 3, 1")
    a.I("v_and_b32 v34, 1, v32")
    a.I("v_mov_b32 v35, %d" % KC_COPY)
    a.I("v_mul_u32_u24 v34, v34, v35")
    a.I("v_and_b32 v35, 6, v32")
    a.I("v_lshl_add_u32 v34, v35, 1, v34")
    a.I("v_lshl_add_u32 v34, v33, 4, v34")
    a.I("v_add_u32 v34, 4096, v34")
    a.I("buffer_load_dwordx4 v[36:39], v34, s[48:51], s10 offen")
    a.I("v_lshlrev_b32 v35, 2, v32")
    a.I("v_lshrrev_b32 v35, v35, s15")
    a.I("v_and_b32 v35, 15, v35")
    a.I("v_mov_b32 v34, 272")
    a.I("v_mad_u32_u24 v35, v32, v34, v35")
    a.I("v_add3_u32 v35, v35, v33, 64")
    a.I("v_add_u32 v35, 192, v35")
    a.I("v_lshl_add_u32 v35, v35, 4, s11")
    for r in range(4): a.I("v_mov_b32 v%d, 0" % (40 + r))
    a.I("v_lshrrev_b32 v44, 5, v2")
    a.I("v_mov_b32 v45, %d" % USTR)
    a.I("v_mul_u32_u24 v44, v44, v45")
    a.I("v_and_b32 v45, 31, v2")
    a.I("v_lshl_add_u32 v44, v45, 4, v44")
    a.I("ds_write_b128 v44, v[40:43] offset:%d" % UB)
    a.I("v_and_b32 v40, 15, v2")
    a.I("v_lshrrev_b32 v41, 4, v2")
    a.I("v_sub_u32 v42, 0, v40")
    a.I("v_and_b32 v42, 7, v42")
    a.I("v_add_u32 v43, v40, v42")
    a.I("v_lshrrev_b32 v43, 3, v43")
    a.I("v_lshlrev_b32 v44, 2, v42")
    a.I("v_lshrrev_b32 v44, v44, s15")
    a.I("v_and_b32 v44, 15, v44")
    a.I("v_mad_u32_u24 v44, v42, v34, v44")
    a.I("v_add_u32 v44, v44, v41")
    a.I("v_sub_u32 v44, v44, v43")
    a.I("s_lshl_b32 s12, s5, 8")
    a.I("s_sub_u32 s13, s11, s12")
    a.I("s_add_u32 s13, s13, %d" % (16 * 254 - 64 * 3 - 512 * 7))
    a.I("v_lshl_add_u32 v6, v44, 4, s13")
    a.I("s_mul_i32 s13, s4, %d" % USTR)
    a.I("s_sub_u32 s13, s13, s12")
    a.I("s_add_u32 s13, s13, %d" % (UB + 480 - 192))
    a.I("v_lshlrev_b32 v7, 5, v40")
    a.I("v_lshl_add_u32 v7, v41, 4, v7")
    a.I("v_add_u32 v7, s13, v7")
    a.I("s_waitcnt vmcnt(19)")
    a.I("s_mov_b32 s12, 0x3b000000")
    a.I("v_mov_b32 v47, 0x3727c5ac")
    for t in range(8):
        s_, q_ = 8 + 2 * t, 9 + 2 * t
        a.I("v_mul_f32 v%d, s12, v%d" % (s_, s_))
        a.I("v_mul_f32 v%d, s12, v%d" % (q_, q_))
        a.I("v_fma_f32 v%d, -v%d, v%d, v%d" % (q_, s_, s_, q_))
        a.I("v_max_f32 v%d, 0, v%d" % (q_, q_))
        bf_round_pair(a, s_, q_)
        a.I("v_add_f32 v%d, v47, v%d" % (q_, q_))
    for t in range(0, 8, 2):
        bf_round_pair(a, 9 + 2 * t, 11 + 2 * t)
    for t in range(8): a.I("v_sqrt_f32 v%d, v%d" % (9 + 2 * t, 9 + 2 * t))
    for t in range(0, 8, 2):
        bf_round_pair(a, 9 + 2 * t, 11 + 2 * t)
    for t in range(8): a.I("v_rcp_f32 v%d, v%d" % (9 + 2 * t, 9 + 2 * t))
    a.I("s_waitcnt vmcnt(17) lgkmcnt(0)")
    a.I("s_lshl_b32 s13, s9, 16")
    a.I("s_and_b32 s14, s9, 0xffff0000")
    for ch in range(2):
        X = 192 + 8 * ch; SK = 208 + 8 * ch; T = 48
        for q in range(4):
            a.I("v_lshlrev_b32 v%d, 16, v%d" % (X + 2 * q, 24 + 4 * ch + q))
            a.I("v_and_b32 v%d, 0xffff0000, v%d" % (X + 2 * q + 1, 24 + 4 * ch + q))
        for t in range(8):
            a.I("v_sub_f32 v%d, v%d, v%d" % (T + t, X + t, 8 + 2 * t))
        for t in range(0, 8, 2): bf_round_pair(a, T + t, T + t + 1)
        for t in range(8):
            a.I("v_mul_f32 v%d, v%d, v%d" % (T + t, T + t, 9 + 2 * t))
        U = 56 + 4 * ch
        for q in range(4):
            a.I("v_cvt_pk_bf16_f32 v%d, v%d, v%d" % (U + q, T + 2 * q, T + 2 * q + 1))
        a.I("ds_write_b128 v3, v[%d:%d] offset:%d" % (U, U + 3, UB + ch * USTR + 512))
        for q in range(4):
            a.I("v_lshlrev_b32 v%d, 16, v%d" % (SK + 2 * q, U + q))
            a.I("v_and_b32 v%d, 0xffff0000, v%d" % (SK + 2 * q + 1, U + q))
        for t in range(8):
            a.I("v_mul_f32 v%d, s%d, v%d" % (SK + t, 13 + ch, SK + t))
        for t in range(0, 8, 2): bf_round_pair(a, SK + t, SK + t + 1)
    a.I("s_waitcnt vmcnt(0)")
    a.I("ds_write_b128 v35, v[36:39]")
    a.I("s_waitcnt lgkmcnt(0)")
    a.I("s_barrier")
    def A(set_, i): return 64 + 64 * set_ + 4 * i
    def B(set_, i): return 96 + 64 * set_ + 4 * i
    def loads(rp):
        s_ = rp & 1
        out = []
        for m in range(8):
            out.append("ds_read_b128 v[%d:%d], v6 offset:%d" % (A(s_, m), A(s_, m) + 3, 512 * (7 - m) + 64 * (3 - rp)))
            out.append("ds_read_b128 v[%d:%d], v7 offset:%d" % (B(s_, m), B(s_, m) + 3, 512 * m + 64 * (3 - rp)))
        return out
    pairs = sorted([(x, y) for x in range(8) for y in range(8) if x + y <= 7], key=lambda p: (max(p), p[0] + p[1]))
    touched = set()
    for l in loads(0)[:14]: a.I(l)
    pend0 = loads(0)[14:]
    for rp in range(4):
        s_ = rp & 1
        nxt = loads(rp + 1) if rp < 3 else []
        lastm = -1
        for n, (x, y) in enumerate(pairs):
            if rp == 0:
                m = max(x, y)
                if m > lastm:
                    if m == 0:
                        a.I("s_waitcnt lgkmcnt(12)")
                        for l in pend0: a.I(l)
                    else:
                        a.I("s_waitcnt lgkmcnt(%d)" % (16 - 2 * m - 2))
                    lastm = m
            t = x + y
            acc = 32 + 4 * t
            c = "v[%d:%d]" % (acc, acc + 3) if t in touched else "0"
            touched.add(t)
            a.I("v_mfma_f32_16x16x32_bf16 v[%d:%d], v[%d:%d], v[%d:%d], %s" % (acc, acc + 3, A(s_, x), A(s_, x) + 3, B(s_, y), B(s_, y) + 3, c))
            if rp > 0 and nxt and n % 2 == 1 and n < 33:
                a.I(nxt.pop(0))
        if rp == 0:
            for l in nxt[:15]: a.I(l)
            a.I(nxt[15])
        if rp < 3:
            a.I("s_waitcnt lgkmcnt(0)")
    a.I("s_lshl_b32 s12, s3, 13")
    a.I("s_add_u32 s12, s12, %d" % YB)
    a.I("v_add_u32 v5, s12, v5")
    for t in range(8):
        a.I("ds_write_b128 v5, v[%d:%d] offset:%d" % (32 + 4 * t, 35 + 4 * t, 1024 * t))
    a.I("v_lshrrev_b32 v4, 5, v0")
    a.I("v_lshlrev_b32 v4, 10, v4")
    a.I("v_bfe_u32 v6, v0, 1, 4")
    a.I("v_lshl_add_u32 v4, v6, 4, v4")
    a.I("v_and_b32 v6, 1, v0")
    a.I("v_lshl_add_u32 v4, v6, 9, v4")
    a.I("v_add_u32 v4, %d, v4" % YB)
    a.I("s_waitcnt lgkmcnt(0)")
    a.I("s_barrier")
    for w in range(4):
        a.I("ds_read_b128 v[%d:%d], v4 offset:%d" % (64 + 8 * w, 67 + 8 * w, 8192 * w))
        a.I("ds_read_b128 v[%d:%d], v4 offset:%d" % (68 + 8 * w, 71 + 8 * w, 8192 * w + 256))
    a.I("v_add_u32 v6, 4096, v3")
    for ch in range(2):
        a.I("s_waitcnt lgkmcnt(%d)" % (4 - 4 * ch))
        Y = 64 + 16 * ch; X = 192 + 8 * ch; SK = 208 + 8 * ch
        for t in range(8): a.I("v_add_f32 v%d, v%d, v%d" % (Y + t, Y + t, Y + 8 + t))
        for t in range(0, 8, 2): bf_round_pair(a, Y + t, Y + t + 1)
        for t in range(8): a.I("v_add_f32 v%d, v%d, v%d" % (Y + t, Y + t, SK + t))
        for t in range(0, 8, 2): bf_round_pair(a, Y + t, Y + t + 1)
        for t in range(8): a.I("v_add_f32 v%d, v%d, v%d" % (Y + t, Y + t, X + t))
        for q in range(4): a.I("v_cvt_pk_bf16_f32 v%d, v%d, v%d" % (Y + 8 + q, Y + 2 * q, Y + 2 * q + 1))
        a.I("global_store_dwordx4 v%d, v[%d:%d], s[52:53]" % (3 if ch == 0 else 6, Y + 8, Y + 11))
    a.L("%s_end" % tag)
    a.I("s_endpgm")
    return a
```

```python
from asmlib import *
from layout import *
from k_p0 import load_kernargs, ws_base
from k_conv import bf_round_pair

G1_GRID = 256
PAIR = 61440
G1_LDS = 2 * PAIR

def gen_g1(tag, XIN, ACT):
    a = Asm()
    load_kernargs(a)
    a.I("v_lshrrev_b32 v1, 6, v0")
    a.I("v_and_b32 v2, 63, v0")
    a.I("v_readfirstlane_b32 s3, v1")
    a.I("s_cmp_ge_u32 s2, %d" % G1_GRID)
    a.I("s_cbranch_scc1 %s_end" % tag)
    a.I("s_and_b32 s4, s2, 7")
    a.I("s_lshr_b32 s5, s2, 3")
    a.I("s_lshr_b32 s6, s4, 1")
    a.I("s_lshl_b32 s6, s6, 2")
    a.I("s_and_b32 s7, s5, 3")
    a.I("s_add_u32 s6, s6, s7")
    a.I("s_and_b32 s7, s4, 1")
    a.I("s_lshl_b32 s7, s7, 3")
    a.I("s_lshr_b32 s5, s5, 2")
    a.I("s_add_u32 s7, s7, s5")
    a.I("v_lshrrev_b32 v3, 4, v2")
    a.I("s_and_b32 s8, s3, 1")
    a.I("s_lshl_b32 s8, s8, 2")
    a.I("v_add_u32 v4, s8, v3")
    a.I("v_bfe_u32 v5, v2, 1, 3")
    a.I("v_xor_b32 v5, v5, v4")
    a.I("v_lshlrev_b32 v5, 5, v5")
    a.I("v_and_b32 v6, 1, v2")
    a.I("v_lshl_add_u32 v5, v6, 4, v5")
    a.I("v_lshl_add_u32 v5, v3, 12, v5")
    a.I("s_lshl_b32 s8, s6, 8")
    a.I("v_add_u32 v5, s8, v5")
    a.I("v_lshlrev_b32 v6, 4, v2")
    a.I("s_waitcnt lgkmcnt(0)")
    for (r, off, sz) in ((44, XIN, 2 * L * D), (48, W1F, 2 * D * F), (52, ACT, 2 * L * F)):
        a.I("s_add_u32 s%d, s%d, 0x%x" % (r, P_WS, off))
        a.I("s_addc_u32 s%d, s%d, 0" % (r + 1, P_WS + 1))
        a.I("s_mov_b32 s%d, 0x%x" % (r + 2, sz))
        a.I("s_mov_b32 s%d, 0x20000" % (r + 3))
    a.I("s_lshl_b32 s9, s3, 14")
    a.I("s_mul_i32 s10, s7, 114688")
    a.I("s_lshl_b32 s11, s3, 10")
    a.I("s_add_u32 s10, s10, s11")
    def issue_pair(p):
        pb = (p & 1) * PAIR
        def xi(sub, i):
            a.I("s_add_u32 m0, s11, %d" % (pb + sub * 16384 + i * 4096))
            a.I("s_add_u32 s12, s9, %d" % ((128 * p + 64 * sub + 16 * i) * 4096))
            a.I("buffer_load_dwordx4 v5, s[44:47], s12 offen lds")
        def wi(i):
            a.I("s_add_u32 m0, s11, %d" % (pb + 32768 + i * 4096))
            a.I("s_add_u32 s12, s10, %d" % (p * 28672 + i * 4096))
            a.I("buffer_load_dwordx4 v6, s[48:51], s12 offen lds")
        for i in range(4): xi(0, i)
        for i in range(4): wi(i)
        for i in range(4): xi(1, i)
        for i in range(4, 7): wi(i)
    issue_pair(0); issue_pair(1)
    a.I("v_lshrrev_b32 v3, 2, v2")
    a.I("v_and_b32 v4, 7, v3")
    a.I("s_lshl_b32 s8, s3, 1")
    a.I("v_xor_b32 v7, s8, v4")
    a.I("v_xor_b32 v8, 1, v7")
    a.I("v_and_b32 v4, 3, v2")
    a.I("v_lshlrev_b32 v4, 3, v4")
    a.I("v_lshl_add_u32 v4, v3, 8, v4")
    a.I("v_lshl_add_u32 v7, v7, 5, v4")
    a.I("v_lshl_add_u32 v8, v8, 5, v4")
    a.I("v_add_u32 v9, %d, v7" % PAIR)
    a.I("v_add_u32 v10, %d, v8" % PAIR)
    a.I("v_add_u32 v11, %d, v6" % PAIR)
    for r in range(12, 20): a.I("v_mov_b32 v%d, 0" % r)
    a.I("s_mov_b32 s13, 0x3f803f80")
    ACC = 20
    SET = [76, 112]
    CC = 148
    def acc(ft, tt): return ACC + 4 * (2 * ft + tt)
    def loads(k):
        p = k >> 2; sub = (k >> 1) & 1; ksl = k & 1
        S = SET[k & 1]
        xa = (7, 8) if (p & 1) == 0 else (9, 10)
        wa = 6 if (p & 1) == 0 else 11
        out = []
        for tt in range(2):
            for n in range(2):
                out.append("ds_read_b64_tr_b16 v[%d:%d], v%d offset:%d" % (S + 4 * tt + 2 * n, S + 4 * tt + 2 * n + 1, xa[tt], sub * 16384 + ksl * 8192 + n * 4096))
        for ft in range(7):
            out.append("ds_read_b128 v[%d:%d], v%d offset:%d" % (S + 8 + 4 * ft, S + 11 + 4 * ft, wa, 32768 + ((2 * sub + ksl) * 7 + ft) * 1024))
        return out
    def compute(k, inter):
        S = SET[k & 1]
        dots = []
        for tt in range(2):
            for q in range(4):
                c = 4 * (q & 1)
                dots.append("v_dot2c_f32_bf16 v%d, s13, v%d" % (12 + 2 * tt + c, S + 4 * tt + q))
                dots.append("v_dot2c_f32_bf16 v%d, v%d, v%d" % (13 + 2 * tt + c, S + 4 * tt + q, S + 4 * tt + q))
        n = 0
        for ft in range(7):
            for tt in range(2):
                A_ = acc(ft, tt)
                a.I("v_mfma_f32_16x16x32_bf16 v[%d:%d], v[%d:%d], v[%d:%d], %s" % (A_, A_ + 3, S + 8 + 4 * ft, S + 11 + 4 * ft, S + 4 * tt, S + 4 * tt + 3, "0" if k == 0 else "v[%d:%d]" % (A_, A_ + 3)))
                if inter: a.I(inter.pop(0))
                if dots: a.I(dots.pop(0))
                if n >= 12 and dots: a.I(dots.pop(0))
                n += 1
        for d in dots: a.I(d)
        for l in inter: a.I(l)
    vm = {0: 22, 2: 15, 4: 7, 6: 15, 8: 7, 10: 29, 12: 21, 14: 14}
    for k in range(17):
        if k < 16 and k % 2 == 0:
            a.I("s_waitcnt vmcnt(%d)" % vm[k])
            a.I("s_barrier")
            if k == 4: issue_pair(2)
            if k == 8:
                issue_pair(3)
                a.I("s_mul_i32 s12, s7, 448")
                a.I("v_lshrrev_b32 v3, 4, v2")
                a.I("v_lshl_add_u32 v3, v3, 4, s12")
                ws_base(a, 56, CS1)
                ws_base(a, 58, B1F)
                for ft in range(7):
                    a.I("global_load_dwordx4 v[%d:%d], v3, s[56:57] offset:%d" % (CC + 4 * ft, CC + 4 * ft + 3, 64 * ft))
                    a.I("global_load_dwordx4 v[%d:%d], v3, s[58:59] offset:%d" % (CC + 28 + 4 * ft, CC + 28 + 4 * ft + 3, 64 * ft))
        ld = loads(k) if k < 16 else []
        if k == 0:
            for l in ld: a.I(l)
        else:
            compute(k - 1, ld)
        if k < 16: a.I("s_waitcnt lgkmcnt(0)")
    for r in range(4): a.I("v_add_f32 v%d, v%d, v%d" % (12 + r, 12 + r, 16 + r))
    for sw in ("v_permlane32_swap_b32", "v_permlane16_swap_b32"):
        for r in range(4): a.I("v_mov_b32 v%d, v%d" % (16 + r, 12 + r))
        for r in range(4): a.I("%s v%d, v%d" % (sw, 12 + r, 16 + r))
        for r in range(4): a.I("v_add_f32 v%d, v%d, v%d" % (12 + r, 12 + r, 16 + r))
    a.I("s_mov_b32 s12, 0x3b000000")
    a.I("v_mov_b32 v16, 0x3727c5ac")
    for tt in range(2):
        s_, q_ = 12 + 2 * tt, 13 + 2 * tt
        a.I("v_mul_f32 v%d, s12, v%d" % (s_, s_))
        a.I("v_mul_f32 v%d, s12, v%d" % (q_, q_))
        a.I("v_fma_f32 v%d, -v%d, v%d, v%d" % (q_, s_, s_, q_))
        a.I("v_max_f32 v%d, 0, v%d" % (q_, q_))
        bf_round_pair(a, s_, q_)
        a.I("v_add_f32 v%d, v16, v%d" % (q_, q_))
    bf_round_pair(a, 13, 15)
    a.I("v_sqrt_f32 v13, v13"); a.I("v_sqrt_f32 v15, v15")
    bf_round_pair(a, 13, 15)
    a.I("v_rcp_f32 v13, v13"); a.I("v_rcp_f32 v15, v15")
    a.I("v_mul_f32 v12, v12, v13"); a.I("v_mul_f32 v14, v14, v15")
    a.I("v_mov_b32 v16, 2.0"); a.I("v_mov_b32 v17, 0x%x" % LOG2E)
    a.I("s_mov_b32 s14, 0x41f00000")
    a.I("s_lshl_b32 s12, s6, 3")
    a.I("s_lshl_b32 s15, s3, 1")
    a.I("s_add_u32 s12, s12, s15")
    a.I("s_mul_i32 s12, s12, 57344")
    a.I("v_add_u32 v3, s12, v6")
    a.I("v_add_u32 v4, 57344, v3")
    a.I("s_mul_i32 s15, s7, 7")
    a.I("s_waitcnt vmcnt(0)")
    T0 = 76
    for ft in range(7):
        a.I("s_add_u32 s12, s15, %d" % ft)
        a.I("s_and_b32 s8, s12, 1")
        a.I("s_lshl_b32 s8, s8, 3")
        a.I("s_lshr_b32 s12, s12, 1")
        a.I("s_lshl_b32 s12, s12, 10")
        a.I("s_add_u32 s%d, s12, s8" % (60 + ft))
        for tt in range(2):
            st = 12 + 2 * tt
            T = T0 + 16 * ((2 * ft + tt) % 4)
            for h in range(2):
                A_ = acc(ft, tt) + 2 * h; c = CC + 4 * ft + 2 * h; b = c + 28
                H = T + 2 * h; W = T + 4 + 2 * h; N_ = T + 8 + 2 * h; Dn = T + 12 + 2 * h
                a.I("v_pk_fma_f32 v[%d:%d], v[%d:%d], v[%d:%d], v[%d:%d] op_sel:[0,0,0] op_sel_hi:[1,0,1] neg_lo:[0,1,0] neg_hi:[0,1,0]" % (H, H + 1, c, c + 1, st, st + 1, b, b + 1))
                a.I("v_pk_fma_f32 v[%d:%d], v[%d:%d], v[%d:%d], v[%d:%d] op_sel:[0,1,0] op_sel_hi:[1,1,1]" % (H, H + 1, A_, A_ + 1, st, st + 1, H, H + 1))
                a.I("v_pk_mul_f32 v[%d:%d], v[%d:%d], v[16:17] op_sel:[0,1] op_sel_hi:[1,1]" % (W, W + 1, H, H + 1))
                a.I("v_min_f32 v%d, s14, v%d" % (W, W))
                a.I("v_min_f32 v%d, s14, v%d" % (W + 1, W + 1))
            for e in range(4): a.I("v_exp_f32 v%d, v%d" % (T + 4 + e, T + 4 + e))
            for h in range(2):
                H = T + 2 * h; W = T + 4 + 2 * h; N_ = T + 8 + 2 * h; Dn = T + 12 + 2 * h
                a.I("v_pk_add_f32 v[%d:%d], v[%d:%d], v[16:17] op_sel:[0,0] op_sel_hi:[1,0]" % (N_, N_ + 1, W, W + 1))
                a.I("v_pk_mul_f32 v[%d:%d], v[%d:%d], v[%d:%d]" % (N_, N_ + 1, N_, N_ + 1, W, W + 1))
                a.I("v_pk_add_f32 v[%d:%d], v[%d:%d], v[16:17] op_sel:[0,0] op_sel_hi:[1,0]" % (Dn, Dn + 1, N_, N_ + 1))
                a.I("v_pk_mul_f32 v[%d:%d], v[%d:%d], v[%d:%d]" % (N_, N_ + 1, N_, N_ + 1, H, H + 1))
            for e in range(4): a.I("v_rcp_f32 v%d, v%d" % (T + 12 + e, T + 12 + e))
            for h in range(2):
                N_ = T + 8 + 2 * h; Dn = T + 12 + 2 * h
                a.I("v_pk_mul_f32 v[%d:%d], v[%d:%d], v[%d:%d]" % (N_, N_ + 1, N_, N_ + 1, Dn, Dn + 1))
            a.I("v_cvt_pk_bf16_f32 v%d, v%d, v%d" % (T + 4, T + 8, T + 9))
            a.I("v_cvt_pk_bf16_f32 v%d, v%d, v%d" % (T + 5, T + 10, T + 11))
            a.I("buffer_store_dwordx2 v[%d:%d], v%d, s[52:55], s%d offen" % (T + 4, T + 5, 3 + tt, 60 + ft))
    a.L("%s_end" % tag)
    a.I("s_endpgm")
    return a
```

```python
from asmlib import *
from layout import *
from k_p0 import load_kernargs, ws_base
from k_conv import bf_round_pair

G2_GRID = 256
G2_LDS = 49152 + 4 * 2048

def gen_g2(tag, ACT, XIN, XOUT, STOUT, final):
    a = Asm()
    load_kernargs(a)
    a.I("v_lshrrev_b32 v1, 6, v0")
    a.I("v_and_b32 v2, 63, v0")
    a.I("v_readfirstlane_b32 s3, v1")
    a.I("s_cmp_ge_u32 s2, %d" % G2_GRID)
    a.I("s_cbranch_scc1 %s_end" % tag)
    a.I("s_and_b32 s4, s2, 7")
    a.I("s_lshr_b32 s5, s2, 3")
    a.I("s_lshl_b32 s6, s4, 2")
    a.I("s_and_b32 s7, s5, 3")
    a.I("s_add_u32 s6, s6, s7")
    a.I("s_lshr_b32 s7, s5, 2")
    a.I("v_lshlrev_b32 v3, 4, v2")
    a.I("v_mov_b32 v6, v3")
    a.I("s_mul_i32 s8, s3, 14336")
    a.I("v_and_b32 v4, 15, v2")
    a.I("v_lshrrev_b32 v5, 4, v2")
    a.I("v_lshlrev_b32 v7, 12, v4")
    a.I("v_lshl_add_u32 v7, v5, 3, v7")
    a.I("s_lshl_b32 s9, s7, 18")
    a.I("s_lshl_b32 s10, s6, 7")
    a.I("s_add_u32 s9, s9, s10")
    a.I("s_lshl_b32 s10, s3, 5")
    a.I("s_add_u32 s9, s9, s10")
    a.I("v_add_u32 v7, s9, v7")
    for b in range(1, 4): a.I("v_add_u32 v%d, 0x%x, v7" % (7 + b, b * 0x10000))
    a.I("s_waitcnt lgkmcnt(0)")
    ws_base(a, 44, XIN)
    for b in range(4):
        a.I("global_load_dwordx2 v[%d:%d], v%d, s[44:45]" % (12 + 2 * b, 13 + 2 * b, 7 + b))
    for i in range(4):
        a.I("s_add_u32 s10, s3, %d" % i)
        a.I("s_and_b32 s10, s10, 3")
        a.I("s_lshl_b32 s11, s6, 2")
        a.I("s_add_u32 s10, s10, s11")
        a.I("s_mul_i32 s10, s10, 57344")
        a.I("s_add_u32 s10, s10, s8")
        ws_base(a, 48 + 2 * i, ACT, 10)
        a.I("s_lshl_b32 s11, s7, 2")
        a.I("s_add_u32 s11, s11, %d" % i)
        a.I("s_mul_i32 s11, s11, 57344")
        a.I("s_add_u32 s11, s11, s8")
        ws_base(a, 56 + 2 * i, W2F, 11)
    BUF = 24
    NB = 7
    def fr(s, i): return BUF + 32 * (s % NB) + 4 * i
    def issue(s):
        if s and s % 4 == 0: a.I("v_add_u32 v3, 4096, v3")
        for i in range(4):
            a.I("global_load_dwordx4 v[%d:%d], v3, s[%d:%d] offset:%d" % (fr(s, i), fr(s, i) + 3, 48 + 2 * i, 49 + 2 * i, 1024 * (s % 4)))
            a.I("global_load_dwordx4 v[%d:%d], v3, s[%d:%d] offset:%d" % (fr(s, 4 + i), fr(s, 4 + i) + 3, 56 + 2 * i, 57 + 2 * i, 1024 * (s % 4)))
    for s in range(NB): issue(s)
    for s in range(14):
        a.I("s_waitcnt vmcnt(%d)" % (8 * (min(13, s + NB - 1) - s)))
        for i in range(4):
            for b in range(4):
                A_ = 4 * (4 * i + b)
                a.I("v_mfma_f32_16x16x32_bf16 a[%d:%d], v[%d:%d], v[%d:%d], %s" % (A_, A_ + 3, fr(s, i), fr(s, i) + 3, fr(s, 4 + b), fr(s, 4 + b) + 3, "0" if s == 0 else "a[%d:%d]" % (A_, A_ + 3)))
        if s + NB < 14: issue(s + NB)
    for i in range(1, 4):
        a.I("s_add_u32 s10, s3, %d" % i)
        a.I("s_and_b32 s10, s10, 3")
        a.I("s_mul_i32 s10, s10, 12288")
        a.I("v_add_u32 v%d, s10, v6" % (20 + i))
    a.I("s_mul_i32 s10, s3, 12288")
    a.I("v_add_u32 v20, s10, v6")
    for i in range(1, 4):
        for b in range(4):
            A_ = 4 * (4 * i + b)
            a.I("ds_write_b128 v%d, a[%d:%d] offset:%d" % (20 + i, A_, A_ + 3, (i - 1) * 4096 + b * 1024))
    for r in range(16): a.I("v_accvgpr_read_b32 v%d, a%d" % (24 + r, r))
    a.I("s_waitcnt lgkmcnt(0)")
    a.I("s_barrier")
    for i in range(3):
        for b in range(4):
            R = 40 + 16 * i + 4 * b
            a.I("ds_read_b128 v[%d:%d], v20 offset:%d" % (R, R + 3, i * 4096 + b * 1024))
    for i in range(3):
        a.I("s_waitcnt lgkmcnt(%d)" % (8 - 4 * i))
        for r in range(0, 16, 2):
            a.I("v_pk_add_f32 v[%d:%d], v[%d:%d], v[%d:%d]" % (24 + r, 25 + r, 24 + r, 25 + r, 40 + 16 * i + r, 41 + 16 * i + r))
    for r in range(0, 16, 2): bf_round_pair(a, 24 + r, 25 + r)
    for b in range(4):
        for h in range(2):
            a.I("v_lshlrev_b32 v%d, 16, v%d" % (40 + 4 * b + 2 * h, 12 + 2 * b + h))
            a.I("v_and_b32 v%d, 0xffff0000, v%d" % (41 + 4 * b + 2 * h, 12 + 2 * b + h))
    for r in range(0, 16, 2):
        a.I("v_pk_add_f32 v[%d:%d], v[%d:%d], v[%d:%d]" % (24 + r, 25 + r, 24 + r, 25 + r, 40 + r, 41 + r))
    for r in range(8):
        a.I("v_cvt_pk_bf16_f32 v%d, v%d, v%d" % (56 + r, 24 + 2 * r, 25 + 2 * r))
    if not final:
        ws_base(a, 44, XOUT)
        for b in range(4):
            a.I("global_store_dwordx2 v%d, v[%d:%d], s[44:45]" % (7 + b, 56 + 2 * b, 57 + 2 * b))
        for r in range(8):
            a.I("v_lshlrev_b32 v%d, 16, v%d" % (24 + 2 * r, 56 + r))
            a.I("v_and_b32 v%d, 0xffff0000, v%d" % (25 + 2 * r, 56 + r))
        for r in range(4):
            a.I("v_add_f32 v%d, v%d, v%d" % (40 + 2 * r, 24 + r, 28 + r))
            a.I("v_mul_f32 v%d, v%d, v%d" % (41 + 2 * r, 24 + r, 24 + r))
        for r in range(4):
            a.I("v_add_f32 v%d, v%d, v%d" % (40 + 2 * r, 40 + 2 * r, 32 + r))
            a.I("v_fmac_f32 v%d, v%d, v%d" % (41 + 2 * r, 28 + r, 28 + r))
        for r in range(4):
            a.I("v_add_f32 v%d, v%d, v%d" % (40 + 2 * r, 40 + 2 * r, 36 + r))
            a.I("v_fmac_f32 v%d, v%d, v%d" % (41 + 2 * r, 32 + r, 32 + r))
        for r in range(4):
            a.I("v_fmac_f32 v%d, v%d, v%d" % (41 + 2 * r, 36 + r, 36 + r))
        for sh in (8, 4, 2, 1):
            for r in range(8):
                a.I("v_add_f32_dpp v%d, v%d, v%d row_ror:%d row_mask:0xf bank_mask:0xf" % (40 + r, 40 + r, 40 + r, sh))
        for r in range(1, 8):
            a.I("v_cmp_eq_u32 vcc, %d, v4" % r)
            a.I("v_cndmask_b32 v40, v40, v%d, vcc" % (40 + r))
        a.I("s_lshl_b32 s10, s6, 9")
        a.I("s_lshl_b32 s11, s3, 7")
        a.I("s_add_u32 s10, s10, s11")
        a.I("v_lshlrev_b32 v41, 5, v5")
        a.I("v_lshl_add_u32 v41, v4, 2, v41")
        a.I("v_add_u32 v41, s10, v41")
        ws_base(a, 46, STOUT)
        a.I("s_mov_b32 exec_lo, 0x00ff00ff")
        a.I("s_mov_b32 exec_hi, 0x00ff00ff")
        a.I("global_atomic_add_f32 v41, v40, s[46:47]")
    else:
        a.I("s_lshl_b32 s10, s3, 11")
        a.I("s_add_u32 s10, s10, 49152")
        a.I("v_lshlrev_b32 v40, 5, v4")
        a.I("v_lshl_add_u32 v40, v5, 3, v40")
        a.I("v_add_u32 v40, s10, v40")
        for b in range(4):
            a.I("ds_write_b64 v40, v[%d:%d] offset:%d" % (56 + 2 * b, 57 + 2 * b, 512 * b))
        a.I("v_bfe_u32 v41, v2, 2, 2")
        a.I("v_lshl_add_u32 v41, v5, 4, v41")
        a.I("v_lshlrev_b32 v41, 5, v41")
        a.I("v_and_b32 v42, 3, v2")
        a.I("v_lshl_add_u32 v41, v42, 3, v41")
        a.I("v_add_u32 v41, s10, v41")
        a.I("s_waitcnt lgkmcnt(0)")
        for n in range(4):
            a.I("ds_read_b64_tr_b16 v[%d:%d], v41 offset:%d" % (24 + 2 * n, 25 + 2 * n, 128 * n))
        a.I("s_lshl_b32 s10, s6, 16")
        a.I("s_lshl_b32 s11, s3, 14")
        a.I("s_add_u32 s10, s10, s11")
        a.I("s_lshl_b32 s11, s7, 7")
        a.I("s_add_u32 s10, s10, s11")
        a.I("v_lshlrev_b32 v42, 10, v4")
        a.I("v_lshl_add_u32 v42, v5, 5, v42")
        a.I("v_add_u32 v42, s10, v42")
        a.I("s_waitcnt lgkmcnt(0)")
        a.I("global_store_dwordx4 v42, v[24:27], %s" % sp(P_OUT))
        a.I("global_store_dwordx4 v42, v[28:31], %s offset:16" % sp(P_OUT))
    a.L("%s_end" % tag)
    a.I("s_endpgm")
    return a
```

```python
from asmlib import *
from layout import *

NK = 256; NT = 64; NW1 = 28; NW2 = 32
P0_GRID = NK + NT + NW1 + NW2
P0_LDS = 65536

def load_kernargs(a):
    a.I("s_load_dwordx16 s[16:31], s[0:1], 0")
    a.I("s_load_dwordx8 s[32:39], s[0:1], 64")
    a.I("s_load_dwordx4 s[40:43], s[0:1], 96")

def ws_base(a, dst, off, extra_sgpr=None):
    a.I("s_add_u32 s%d, s%d, 0x%x" % (dst, P_WS, off))
    a.I("s_addc_u32 s%d, s%d, 0" % (dst + 1, P_WS + 1))
    if extra_sgpr is not None:
        a.I("s_add_u32 s%d, s%d, s%d" % (dst, dst, extra_sgpr))
        a.I("s_addc_u32 s%d, s%d, 0" % (dst + 1, dst + 1))

def cmul(a, d, x, y):
    a.I("v_pk_mul_f32 v[%d:%d], v[%d:%d], v[%d:%d] op_sel:[0,0] op_sel_hi:[0,1]" % (d, d + 1, x, x + 1, y, y + 1))
    a.I("v_pk_fma_f32 v[%d:%d], v[%d:%d], v[%d:%d], v[%d:%d] op_sel:[1,1,0] op_sel_hi:[1,0,1] neg_lo:[0,1,0]" % (d, d + 1, x, x + 1, y, y + 1, d, d + 1))

def gen_p0():
    a = Asm()
    load_kernargs(a)
    a.I("v_lshrrev_b32 v1, 6, v0")
    a.I("v_and_b32 v2, 63, v0")
    a.I("v_readfirstlane_b32 s3, v1")
    a.I("s_cmp_ge_u32 s2, %d" % P0_GRID)
    a.I("s_cbranch_scc1 P0_end")
    a.I("s_cmp_ge_u32 s2, %d" % (NK + NT + NW1))
    a.I("s_cbranch_scc1 P0_w2")
    a.I("s_cmp_ge_u32 s2, %d" % (NK + NT))
    a.I("s_cbranch_scc1 P0_w1")
    a.I("s_cmp_ge_u32 s2, %d" % NK)
    a.I("s_cbranch_scc1 P0_tr")
    a.C("K generation role")
    ROW = 272; WB = 53 * ROW
    a.I("s_lshl_b32 s4, s2, 9")
    a.I("v_lshl_add_u32 v3, v0, 1, s4")
    a.I("s_lshl_b32 s5, s2, 2")
    a.I("s_waitcnt lgkmcnt(0)")
    a.I("global_load_ushort v4, v3, %s" % sp(P_LAR))
    a.I("global_load_ushort v5, v3, %s" % sp(P_AI))
    a.I("global_load_ushort v6, v3, %s" % sp(P_CR))
    a.I("global_load_ushort v7, v3, %s" % sp(P_CI))
    a.I("s_load_dword s6, %s, s5" % sp(P_LDT))
    a.I("s_mul_i32 s7, s3, %d" % WB)
    a.I("v_lshl_add_u32 v8, v2, 2, s7")
    a.I("v_and_b32 v9, 31, v2")
    a.I("v_lshrrev_b32 v10, 5, v2")
    a.I("v_min_u32 v11, 20, v9")
    a.I("v_mov_b32 v12, %d" % ROW)
    a.I("v_mul_u32_u24 v13, v9, v12")
    a.I("v_lshl_add_u32 v13, v10, 4, v13")
    a.I("v_add_u32 v13, s7, v13")
    a.I("v_mul_u32_u24 v14, v11, v12")
    a.I("v_lshl_add_u32 v14, v10, 4, v14")
    a.I("v_add_u32 v14, s7, v14")
    a.I("v_lshlrev_b32 v15, 8, v11")
    a.I("v_add_u32 v16, %d, v15" % ((4 - 9 * 256) & 0xffffffff))
    a.I("v_cmp_le_u32 vcc, 9, v11")
    a.I("v_cndmask_b32 v17, v15, v16, vcc")
    a.I("v_add_u32 v16, %d, v15" % ((2 - 13 * 256) & 0xffffffff))
    a.I("v_cmp_le_u32 vcc, 13, v11")
    a.I("v_cndmask_b32 v17, v17, v16, vcc")
    a.I("v_add_u32 v16, %d, v15" % ((6 - 15 * 256) & 0xffffffff))
    a.I("v_cmp_le_u32 vcc, 15, v11")
    a.I("v_cndmask_b32 v17, v17, v16, vcc")
    a.I("v_lshlrev_b32 v16, 1, v11")
    a.I("v_add_u32 v16, %d, v16" % ((1 - 34) & 0xffffffff))
    a.I("v_cmp_le_u32 vcc, 17, v11")
    a.I("v_cndmask_b32 v17, v17, v16, vcc")
    a.I("v_lshl_add_u32 v17, v10, 5, v17")
    a.I("v_lshlrev_b32 v17, 2, v17")
    a.I("v_add_u32 v17, s7, v17")
    a.I("s_waitcnt lgkmcnt(0)")
    a.I("s_lshr_b32 s8, s3, 1")
    a.I("s_lshl_b32 s8, s8, 4")
    a.I("s_lshr_b32 s6, s6, s8")
    a.I("s_lshl_b32 s6, s6, 16")
    a.I("v_mov_b32 v18, 0x%x" % LOG2E)
    a.I("v_mul_f32 v19, s6, v18")
    a.I("v_exp_f32 v19, v19")
    a.I("v_cvt_pk_bf16_f32 v19, v19, v19")
    a.I("v_lshlrev_b32 v19, 16, v19")
    a.I("s_waitcnt vmcnt(0)")
    for r in (4, 5, 6, 7): a.I("v_lshlrev_b32 v%d, 16, v%d" % (r, r))
    a.I("v_mul_f32 v4, v4, v18")
    a.I("v_exp_f32 v4, v4")
    a.I("v_cvt_pk_bf16_f32 v4, v4, v4")
    a.I("v_lshlrev_b32 v4, 16, v4")
    a.I("v_mul_f32 v4, v4, v19")
    a.I("v_mul_f32 v4, v4, v18")
    a.I("v_mul_f32 v5, v5, v19")
    a.I("v_mul_f32 v5, 0.15915494, v5")
    a.I("v_max_f32 v20, abs(v6), abs(v7)")
    for sh in ("row_shr:1", "row_shr:2", "row_shr:4", "row_shr:8"):
        a.I("v_max_f32_dpp v20, v20, v20 %s row_mask:0xf bank_mask:0xf bound_ctrl:0" % sh)
    a.I("v_max_f32_dpp v20, v20, v20 row_bcast:15 row_mask:0xa bank_mask:0xf")
    a.I("v_max_f32_dpp v20, v20, v20 row_bcast:31 row_mask:0xc bank_mask:0xf")
    a.I("v_frexp_exp_i32_f32 v20, v20")
    a.I("v_readlane_b32 s9, v20, 63")
    a.I("s_sub_i32 s10, 0, s9")
    a.I("v_ldexp_f32 v22, v6, s10")
    a.I("v_ldexp_f32 v23, v7, s10")
    a.I("s_add_i32 s9, s9, 1")
    a.I("v_ldexp_f32 v21, v19, s9")
    def direct(d, p):
        a.I("v_mul_f32 v24, %s, v4" % p[0])
        a.I("v_mul_f32 v25, %s, v5" % p[1])
        a.I("v_exp_f32 v24, v24")
        a.I("v_fract_f32 v25, v25")
        a.I("v_cos_f32 v26, v25")
        a.I("v_sin_f32 v27, v25")
        a.I("v_mul_f32 v%d, v24, v26" % d)
        a.I("v_mul_f32 v%d, v24, v27" % (d + 1))
    import struct
    f = lambda x: "0x%08x" % struct.unpack("<I", struct.pack("<f", x))[0]
    Z = {}
    nxt = [30]
    def alloc():
        r = nxt[0]; nxt[0] += 2; return r
    for p in (1, 8, 64, 256):
        Z[p] = alloc(); direct(Z[p], (f(-float(p)), f(float(p))))
    def wrA(row, r):
        a.I("v_cvt_pk_f16_f32 v28, v%d, v%d" % (r, r + 1))
        a.I("ds_write_b32 v8, v28 offset:%d" % (row * ROW))
    def wrB(row, r):
        a.I("v_cvt_pk_f16_f32 v29, v%d, -v%d" % (r, r + 1))
        a.I("ds_write_b32 v8, v29 offset:%d" % ((32 + row) * ROW))
    a.I("v_mov_b32 v28, 0x3c00")
    a.I("ds_write_b32 v8, v28")
    for i in range(2, 8):
        Z[8 * i] = alloc(); cmul(a, Z[8 * i], Z[8 * (i - 1)], Z[8])
        Z[i] = alloc(); cmul(a, Z[i], Z[i - 1], Z[1])
    Z[128] = alloc(); cmul(a, Z[128], Z[64], Z[64])
    Z[192] = alloc(); cmul(a, Z[192], Z[128], Z[64])
    for i in range(1, 8): wrA(i, Z[8 * i])
    for m in (1, 2, 3): wrA(8 * m, Z[64 * m])
    t0 = alloc(); t1 = alloc()
    for m in (1, 2, 3):
        for i in range(1, 8):
            t = t0 if (i & 1) else t1
            cmul(a, t, Z[64 * m], Z[8 * i]); wrA(8 * m + i, t)
    Cm = {0: 22}
    wrB(0, 22)
    for m in range(1, 9):
        Cm[m] = alloc(); cmul(a, Cm[m], Cm[m - 1], Z[256]); wrB(m, Cm[m])
    k = 0
    for row, (m, p) in enumerate([(0, 4), (1, 4), (2, 4), (3, 4), (0, 2), (1, 2), (0, 6), (1, 6), (0, 1), (0, 3), (0, 5), (0, 7)]):
        t = t0 if (row & 1) else t1
        cmul(a, t, Cm[m], Z[p]); wrB(9 + row, t)
    a.I("s_waitcnt lgkmcnt(0)")
    for st in range(8):
        a.I("ds_read_b128 v[%d:%d], v13 offset:%d" % (32 + 4 * st, 35 + 4 * st, st * 32))
        a.I("ds_read_b128 v[%d:%d], v14 offset:%d" % (64 + 4 * st, 67 + 4 * st, 32 * ROW + st * 32))
    for st in range(8):
        a.I("s_waitcnt lgkmcnt(%d)" % (14 - 2 * st))
        a.I("v_mfma_f32_32x32x16_f16 v[96:111], v[%d:%d], v[%d:%d], %s" % (32 + 4 * st, 35 + 4 * st, 64 + 4 * st, 67 + 4 * st, "0" if st == 0 else "v[96:111]"))
    for r in range(16):
        a.I("v_mul_f32 v%d, v%d, v21" % (96 + r, 96 + r))
        a.I("ds_write_b32 v17, v%d offset:%d" % (96 + r, 4 * (64 * (r >> 2) + 8 * (r & 3))))
    a.I("s_waitcnt lgkmcnt(0)")
    a.I("s_barrier")
    a.I("s_lshr_b32 s8, s3, 1")
    a.I("s_mul_i32 s11, s8, %d" % (2 * WB))
    a.I("s_lshl_b32 s12, s2, 1")
    a.I("s_add_u32 s12, s12, s8")
    a.I("s_mul_i32 s12, s12, %d" % KC_CH)
    ws_base(a, 44, KC, 12)
    a.I("v_and_b32 v3, 127, v0")
    a.I("v_lshlrev_b32 v4, 2, v3")
    a.I("v_add_u32 v31, %d, v4" % KC_COPY)
    a.I("v_lshlrev_b32 v3, 1, v3")
    a.I("v_sub_u32 v3, 2048, v3")
    for m in range(9):
        b = 32 + 8 * (m % 2) * 2
        for e in range(3):
            a.I("v_add_u32 v%d, %d, v3" % (b + e, (-256 * m - e) & 0xffffffff))
        if m == 8:
            for e in range(3):
                a.I("v_max_i32 v%d, 0, v%d" % (b + 8 + e, b + e))
                a.I("v_cvt_f32_u32 v%d, v%d" % (b + 3 + e, b + 8 + e))
        else:
            if m == 7:
                a.I("v_max_i32 v%d, 0, v%d" % (b + 2, b + 2))
            for e in range(3):
                a.I("v_cvt_f32_u32 v%d, v%d" % (b + 3 + e, b + e))
        if m < 7:
            a.I("v_cvt_pk_bf16_f32 v%d, v%d, v%d" % (b + 3, b + 3, b + 4))
            a.I("v_cvt_pk_bf16_f32 v%d, v%d, v%d" % (b + 5, b + 5, b + 5))
            a.I("v_and_b32 v%d, 0xffff0000, v%d" % (b + 4, b + 3))
            a.I("v_lshlrev_b32 v%d, 16, v%d" % (b + 3, b + 3))
            a.I("v_lshlrev_b32 v%d, 16, v%d" % (b + 5, b + 5))
        for e in range(3):
            a.I("v_cvt_u32_f32 v%d, v%d" % (b + 3 + e, b + 3 + e))
            a.I("v_lshl_add_u32 v%d, v%d, 2, s11" % (b + 3 + e, b + 3 + e))
        for e in range(3):
            a.I("ds_read_b32 v%d, v%d" % (b + 8 + e, b + 3 + e))
            a.I("ds_read_b32 v%d, v%d offset:%d" % (b + 11 + e, b + 3 + e, WB))
        a.I("s_waitcnt lgkmcnt(0)")
        for e in range(3):
            a.I("v_add_f32 v%d, v%d, v%d" % (b + 8 + e, b + 8 + e, b + 11 + e))
        if m == 8:
            for e in range(3):
                a.I("v_cmp_le_i32 vcc, 0, v%d" % (b + e))
                a.I("v_cndmask_b32 v%d, 0, v%d, vcc" % (b + 8 + e, b + 8 + e))
        a.I("v_cvt_pk_bf16_f32 v%d, v%d, v%d" % (b + 14, b + 8, b + 9))
        a.I("v_cvt_pk_bf16_f32 v%d, v%d, v%d" % (b + 15, b + 9, b + 10))
        off = 512 * m
        if off < 4096:
            a.I("global_store_dword v4, v%d, s[44:45] offset:%d" % (b + 14, off))
            a.I("global_store_dword v31, v%d, s[44:45] offset:%d" % (b + 15, off))
        else:
            a.I("v_add_u32 v4, 4096, v4")
            a.I("v_add_u32 v31, 4096, v31")
            a.I("global_store_dword v4, v%d, s[44:45]" % (b + 14))
            a.I("global_store_dword v31, v%d, s[44:45]" % (b + 15))
    a.I("s_endpgm")
    a.L("P0_tr")
    a.C("transpose + stats role: 32 rows per WG, wave handles 8 rows")
    RS = 1024 + 32
    a.I("s_sub_u32 s4, s2, %d" % NK)
    a.I("s_lshl_b32 s5, s4, 2")
    a.I("s_add_u32 s5, s5, s3")
    a.I("s_lshl_b32 s6, s5, 13")
    a.I("v_lshl_add_u32 v3, v2, 4, s6")
    a.I("v_add_u32 v4, 4096, v3")
    a.I("s_waitcnt lgkmcnt(0)")
    for r in range(8):
        a.I("global_load_dwordx4 v[%d:%d], v%d, %s offset:%d" % (32 + 4 * r, 35 + 4 * r, 3 if r < 4 else 4, sp(P_U), (r & 3) * 1024))
    a.I("s_mul_i32 s7, s3, %d" % (8 * RS))
    a.I("v_lshl_add_u32 v5, v2, 4, s7")
    a.I("s_mov_b32 s8, 0x3f803f80")
    for r in range(16): a.I("v_mov_b32 v%d, 0" % (8 + r))
    ws_base(a, 44, ST2)
    a.I("s_lshl_b32 s9, s4, 8")
    a.I("v_lshl_add_u32 v6, v2, 2, s9")
    a.I("s_cmp_lg_u32 s3, 0")
    a.I("s_cbranch_scc1 P0_tr_nz")
    a.I("global_store_dword v6, v8, s[44:45]")
    a.I("s_waitcnt vmcnt(0)")
    a.L("P0_tr_nz")
    a.I("s_waitcnt vmcnt(0)")
    for r in range(8):
        a.I("ds_write_b128 v5, v[%d:%d] offset:%d" % (32 + 4 * r, 35 + 4 * r, r * RS))
    for q in range(4):
        for r in range(8):
            a.I("v_dot2c_f32_bf16 v%d, s8, v%d" % (8 + 2 * r, 32 + 4 * r + q))
        for r in range(8):
            a.I("v_dot2c_f32_bf16 v%d, v%d, v%d" % (9 + 2 * r, 32 + 4 * r + q, 32 + 4 * r + q))
    for sh in ("row_shr:1", "row_shr:2", "row_shr:4", "row_shr:8"):
        for r in range(16):
            a.I("v_add_f32_dpp v%d, v%d, v%d %s row_mask:0xf bank_mask:0xf bound_ctrl:0" % (8 + r, 8 + r, 8 + r, sh))
    for sh in ("row_bcast:15 row_mask:0xa", "row_bcast:31 row_mask:0xc"):
        for r in range(16):
            a.I("v_add_f32_dpp v%d, v%d, v%d %s bank_mask:0xf" % (8 + r, 8 + r, 8 + r, sh))
    ws_base(a, 46, ST0)
    a.I("s_lshl_b32 s9, s5, 6")
    a.I("v_mov_b32 v6, s9")
    a.I("s_mov_b32 exec_lo, 0")
    a.I("s_mov_b32 exec_hi, 0x80000000")
    for q in range(4):
        a.I("global_store_dwordx4 v6, v[%d:%d], s[46:47] offset:%d" % (8 + 4 * q, 11 + 4 * q, 16 * q))
    a.I("s_mov_b64 exec, -1")
    a.I("s_waitcnt lgkmcnt(0)")
    a.I("s_barrier")
    a.I("v_lshrrev_b32 v3, 4, v2")
    a.I("v_bfe_u32 v4, v2, 2, 2")
    a.I("v_lshl_add_u32 v4, v3, 3, v4")
    a.I("v_mov_b32 v5, %d" % RS)
    a.I("v_mul_u32_u24 v4, v4, v5")
    a.I("v_and_b32 v5, 3, v2")
    a.I("v_lshl_add_u32 v4, v5, 3, v4")
    a.I("s_lshl_b32 s7, s3, 8")
    a.I("v_add_u32 v4, s7, v4")
    for t in range(8):
        a.I("ds_read_b64_tr_b16 v[%d:%d], v4 offset:%d" % (32 + 4 * t, 33 + 4 * t, 32 * t))
        a.I("ds_read_b64_tr_b16 v[%d:%d], v4 offset:%d" % (34 + 4 * t, 35 + 4 * t, 32 * t + 4 * RS))
    a.I("v_and_b32 v5, 15, v2")
    a.I("v_lshlrev_b32 v5, 12, v5")
    a.I("v_lshl_add_u32 v5, v3, 4, v5")
    a.I("s_lshl_b32 s7, s3, 19")
    a.I("s_lshl_b32 s9, s4, 6")
    a.I("s_add_u32 s7, s7, s9")
    a.I("v_add_u32 v5, s7, v5")
    ws_base(a, 44, XT0)
    for t in range(8):
        a.I("s_waitcnt lgkmcnt(%d)" % (14 - 2 * t))
        a.I("global_store_dwordx4 v5, v[%d:%d], s[44:45]" % (32 + 4 * t, 35 + 4 * t))
        if t < 7: a.I("v_add_u32 v5, 0x10000, v5")
    a.I("s_endpgm")
    def wprep(label, ptr, rowbytes, nks, colsum, fstride):
        a.I("s_mul_i32 s7, s3, %d" % (nks * 32 * 32))
        a.I("v_lshrrev_b32 v3, 1, v2")
        a.I("v_and_b32 v4, 1, v2")
        a.I("s_mul_i32 s8, s5, %d" % rowbytes)
        a.I("s_lshl_b32 s9, s4, 5")
        a.I("s_add_u32 s8, s8, s9")
        a.I("v_mov_b32 v5, %d" % rowbytes)
        a.I("v_mul_u32_u24 v5, v3, v5")
        a.I("v_lshl_add_u32 v5, v4, 4, v5")
        a.I("v_add_u32 v5, s8, v5")
        a.I("v_lshl_add_u32 v6, v2, 4, s7")
        a.I("s_waitcnt lgkmcnt(0)")
        for ks in range(nks):
            a.I("global_load_dwordx4 v[%d:%d], v5, %s" % (32 + 4 * ks, 35 + 4 * ks, sp(ptr)))
            if ks < nks - 1: a.I("v_add_u32 v5, %d, v5" % (32 * rowbytes))
        if colsum:
            a.I("v_lshl_add_u32 v9, s4, 4, v2")
            a.I("v_lshlrev_b32 v10, 1, v9")
            a.I("v_min_u32 v10, %d, v10" % (2 * F - 2))
            a.I("global_load_ushort v11, v10, %s" % sp(P_B1))
        a.I("v_lshrrev_b32 v7, 2, v2")
        a.I("v_and_b32 v8, 3, v2")
        a.I("v_lshlrev_b32 v7, 5, v7")
        a.I("v_lshl_add_u32 v7, v8, 3, v7")
        a.I("v_add_u32 v7, s7, v7")
        extra = 1 if colsum else 0
        for ks in range(nks):
            a.I("s_waitcnt vmcnt(%d)" % (nks - 1 - ks + extra))
            a.I("ds_write_b128 v6, v[%d:%d] offset:%d" % (32 + 4 * ks, 35 + 4 * ks, 1024 * ks))
        a.I("s_waitcnt lgkmcnt(0)")
        for ks in range(nks):
            a.I("ds_read_b64_tr_b16 v[%d:%d], v7 offset:%d" % (32 + 4 * ks, 33 + 4 * ks, 1024 * ks))
            a.I("ds_read_b64_tr_b16 v[%d:%d], v7 offset:%d" % (34 + 4 * ks, 35 + 4 * ks, 1024 * ks + 512))
            if ks % 4 == 3: a.I("s_waitcnt lgkmcnt(4)")
        a.I("v_lshl_add_u32 v5, v2, 4, s6")
        a.I("s_waitcnt lgkmcnt(0)")
        for ks in range(nks):
            if ks: a.I("v_add_u32 v5, %d, v5" % fstride)
            a.I("global_store_dwordx4 v5, v[%d:%d], %s" % (32 + 4 * ks, 35 + 4 * ks, sp(P_WS)))
        if colsum:
            a.I("s_mov_b32 s8, 0x3f803f80")
            for q in range(4): a.I("v_mov_b32 v%d, 0" % (12 + q))
            for ks in range(nks):
                for q in range(4):
                    a.I("v_dot2c_f32_bf16 v%d, s8, v%d" % (12 + q, 32 + 4 * ks + q))
            a.I("v_add_f32 v12, v12, v13")
            a.I("v_add_f32 v14, v14, v15")
            a.I("v_add_f32 v12, v12, v14")
            a.I("v_mov_b32 v13, v12")
            a.I("v_permlane32_swap_b32 v12, v13")
            a.I("v_add_f32 v12, v12, v13")
            a.I("v_mov_b32 v13, v12")
            a.I("v_permlane16_swap_b32 v12, v13")
            a.I("v_add_f32 v12, v12, v13")
            a.I("v_lshlrev_b32 v9, 2, v9")
            a.I("v_lshlrev_b32 v11, 16, v11")
            ws_base(a, 44, CS1)
            a.I("s_mov_b64 exec, 0xffff")
            a.I("global_store_dword v9, v12, s[44:45]")
            a.I("v_add_u32 v9, %d, v9" % (B1F - CS1))
            a.I("global_store_dword v9, v11, s[44:45]")
        a.I("s_endpgm")
    a.L("P0_w1")
    a.I("s_sub_u32 s4, s2, %d" % (NK + NT))
    a.I("s_lshl_b32 s4, s4, 2")
    a.I("s_add_u32 s4, s4, s3")
    a.I("s_mov_b32 s5, 0")
    a.I("s_mul_i32 s10, s4, 9363")
    a.I("s_lshr_b32 s10, s10, 16")
    a.I("s_mul_i32 s11, s10, 105")
    a.I("s_add_u32 s6, s11, s4")
    a.I("s_lshl_b32 s6, s6, 10")
    a.I("s_add_u32 s6, s6, 0x%x" % W1F)
    wprep("w1", P_W1, 2 * F, 16, True, 7168)
    a.L("P0_w2")
    a.I("s_sub_u32 s10, s2, %d" % (NK + NT + NW1))
    a.I("s_and_b32 s4, s10, 7")
    a.I("s_lshl_b32 s4, s4, 2")
    a.I("s_add_u32 s4, s4, s3")
    a.I("s_lshr_b32 s10, s10, 3")
    a.I("s_mul_i32 s5, s10, 448")
    a.I("s_mul_i32 s6, s4, 56")
    a.I("s_mul_i32 s10, s10, 14")
    a.I("s_add_u32 s6, s6, s10")
    a.I("s_lshl_b32 s6, s6, 10")
    a.I("s_add_u32 s6, s6, 0x%x" % W2F)
    wprep("w2", P_W2, 2 * D, 14, False, 1024)
    a.L("P0_end")
    a.I("s_endpgm")
    return a
```

```python
L = 2048; D = 512; F = 1792; N = 128
KC_COPY = 4608
KC_CH = 2 * KC_COPY
KC  = 0x0000000
XT0 = 0x0500000
XT1 = 0x0700000
XT2 = 0x0900000
XT3 = 0x0B00000
ST0 = 0x0D00000
ST2 = 0x0D10000
CS1 = 0x0D20000
B1F = 0x0D22000
W1F = 0x0E00000
W2F = 0x1000000
ACT1 = 0x1200000
ACT2 = 0x1A00000
WS_END = 0x2200000
P_U, P_LAR, P_AI, P_CR, P_CI, P_LDT, P_DSK, P_BX, P_W1, P_B1, P_W2, P_OUT, P_DBG, P_WS = [16 + 2 * i for i in range(14)]
def sp(i): return "s[%d:%d]" % (i, i + 1)
LOG2E = 0x3fb8aa3b
```

```python
import sys
from asmlib import *
from layout import *
import k_p0, k_conv, k_g1, k_g2
NAME = "interleave_layers__ssm_conv_s4d__dense_activation_mish__prompt"
def build(path, extra_nops=0):
    ref = open("cdna_kernels/%s.s.ref" % NAME).read()
    hdr = [l for l in ref.split("\n") if l.startswith(";") and "@launch" not in l and "Override" not in l and "grid=ceil" not in l]
    ks = [
        ("p0_kernel", k_p0.gen_p0(), k_p0.P0_GRID, k_p0.P0_LDS),
        ("conv1_kernel", k_conv.gen_conv("c1", XT0, ST0, XT1), k_conv.CONV_GRID, k_conv.CONV_LDS),
        ("g1a_kernel", k_g1.gen_g1("g1a", XT1, ACT1), k_g1.G1_GRID, k_g1.G1_LDS),
        ("g2a_kernel", k_g2.gen_g2("g2a", ACT1, XT1, XT2, ST2, False), k_g2.G2_GRID, k_g2.G2_LDS),
        ("conv2_kernel", k_conv.gen_conv("c2", XT2, ST2, XT3), k_conv.CONV_GRID, k_conv.CONV_LDS),
        ("g1b_kernel", k_g1.gen_g1("g1b", XT3, ACT2), k_g1.G1_GRID, k_g1.G1_LDS),
        ("g2b_kernel", k_g2.gen_g2("g2b", ACT2, XT3, None, None, True), k_g2.G2_GRID, k_g2.G2_LDS),
    ]
    if extra_nops:
        n = Asm(); n.I("s_endpgm")
        ks.append(("nop_kernel", n, 256, 0))
    out = list(hdr)
    for (n, a, g, lds) in ks:
        for rep in range(extra_nops if n == "nop_kernel" else 1):
            out.append("; @launch kernel=%s grid=(%d,1,1) block=(256,1,1) lds=%d" % (n, g, lds))
    out.append('.amdgcn_target "amdgcn-amd-amdhsa--gfx950"')
    out.append(".text")
    descs = []
    for (n, a, g, lds) in ks:
        b, d, info = kernel_text(n, a)
        print(n, info)
        out.append(b); descs.append(d)
    out.append('.section .rodata,"a"')
    out += descs
    open(path, "w").write("\n".join(out))
if __name__ == "__main__":
    build(sys.argv[1] if len(sys.argv) > 1 else "cdna_kernels/%s.s" % NAME, int(sys.argv[2]) if len(sys.argv) > 2 else 0)
```

```python
import re

TRANS = ("v_exp_f32", "v_log_f32", "v_rcp_f32", "v_rsq_f32", "v_sqrt_f32", "v_sin_f32", "v_cos_f32",
         "v_rcp_iflag_f32", "v_exp_f16", "v_log_f16", "v_rcp_f16", "v_rsq_f16", "v_sqrt_f16")

def regs_of(tok):
    tok = tok.strip()
    tok = tok.lstrip("-")
    m = re.match(r"^abs\((.*)\)$", tok) or re.match(r"^\|(.*)\|$", tok)
    if m: tok = m.group(1)
    m = re.match(r"^([vas])(\d+)$", tok)
    if m: return [(m.group(1), int(m.group(2)))]
    m = re.match(r"^([vas])\[(\d+):(\d+)\]$", tok)
    if m: return [(m.group(1), i) for i in range(int(m.group(2)), int(m.group(3)) + 1)]
    if tok == "vcc": return [("s", 106), ("s", 107)]
    if tok == "vcc_lo": return [("s", 106)]
    if tok == "vcc_hi": return [("s", 107)]
    if tok == "exec": return [("s", 126), ("s", 127)]
    if tok == "m0": return [("s", 124)]
    return []

def split_ops(s):
    ops = []; depth = 0; cur = ""
    for ch in s:
        if ch in "[(": depth += 1
        if ch in "])": depth -= 1
        if ch == "," and depth == 0:
            ops.append(cur.strip()); cur = ""
        else:
            cur += ch
    if cur.strip(): ops.append(cur.strip())
    if ops:
        last = ops[-1].split()
        mods = last[1:]
        ops[-1] = last[0]
    else:
        mods = []
    return ops, mods

class Ins:
    def __init__(self, text):
        self.text = text
        t = text.split(";")[0].strip()
        self.is_label = t.endswith(":")
        self.op = ""
        self.defs = []; self.uses = []
        self.kind = "other"
        self.srcC = []; self.srcAB = []
        self.passes = 0
        self.storedata = []
        self.mods = []
        if self.is_label or not t or t.startswith("."):
            self.kind = "label" if self.is_label else "dir"
            return
        parts = t.split(None, 1)
        op = parts[0]; self.op = op
        ops, mods = split_ops(parts[1]) if len(parts) > 1 else ([], [])
        self.mods = mods
        base = re.sub(r"_(e32|e64|dpp|sdwa)$", "", op)
        self.base = base
        R = [regs_of(o) for o in ops]
        flat = lambda L: [x for l in L for x in l]
        self.dpp = op.endswith("_dpp") or any(m.startswith(("row_", "quad_perm", "wave_")) for m in mods)
        if op.startswith("v_mfma"):
            self.kind = "mfma"
            self.defs = R[0]; self.srcAB = R[1] + R[2]; self.srcC = R[3]
            self.uses = self.srcAB + self.srcC
            if "32x32x16" in op or "32x32x8" in op: self.passes = 8
            elif "16x16x32" in op or "16x16x16" in op: self.passes = 4
            elif "32x32x2_f32" in op: self.passes = 16
            elif "16x16x4_f32" in op: self.passes = 8
            else: raise Exception("unknown mfma " + op)
        elif op.startswith("v_"):
            self.kind = "valu"
            self.trans = base in TRANS
            if base.startswith("v_cmp"):
                self.defs = R[0]; self.uses = flat(R[1:])
                if base.startswith("v_cmpx"): self.defs = self.defs + regs_of("exec")
            elif base in ("v_add_co_u32", "v_sub_co_u32", "v_subrev_co_u32", "v_addc_co_u32", "v_subb_co_u32", "v_mad_u64_u32", "v_div_scale_f32"):
                self.defs = R[0] + R[1]; self.uses = flat(R[2:])
            elif base.startswith("v_permlane") and "swap" in base:
                self.defs = R[0] + R[1]; self.uses = R[0] + R[1]
            elif base in ("v_fmac_f32", "v_dot2c_f32_bf16", "v_pk_fmac_f16", "v_dot2c_f32_f16", "v_writelane_b32"):
                self.defs = R[0]; self.uses = flat(R)
            elif base == "v_nop":
                pass
            else:
                self.defs = R[0]; self.uses = flat(R[1:])
                if self.dpp or op.endswith("_sdwa"): self.uses = self.uses + R[0]
                if base == "v_cndmask_b32" and len(ops) == 3: self.uses += regs_of("vcc")
        elif op.startswith(("buffer_", "global_", "flat_")):
            self.kind = "vmem"
            lds = ("lds" in mods) or ("_lds_" in op)
            self.lds = lds
            if op in ("buffer_wbl2", "buffer_inv"):
                pass
            elif lds:
                self.uses = flat(R) + regs_of("m0")
            elif "_load" in op:
                self.defs = R[0]; self.uses = flat(R[1:])
                if "d16" in op: self.uses += R[0]
            elif "_store" in op:
                self.uses = flat(R)
                d = R[0] if op.startswith("buffer_") else R[1]
                if len(d) >= 3: self.storedata = d
            elif "_atomic" in op:
                if "sc0" in mods:
                    self.defs = R[0]
                    self.uses = flat(R) if op.startswith("buffer_") else flat(R[1:])
                else:
                    self.uses = flat(R)
            else: raise Exception("unknown vmem " + op)
        elif op.startswith("ds_"):
            self.kind = "ds"
            if op.startswith(("ds_read", "ds_bpermute", "ds_permute", "ds_swizzle")) or "_rtn" in op:
                self.defs = R[0]; self.uses = flat(R[1:])
                if "d16" in op: self.uses += R[0]
            else:
                self.uses = flat(R)
        elif op.startswith("s_"):
            if op.startswith(("s_load", "s_buffer_load", "s_memtime", "s_memrealtime", "s_atomic")):
                self.kind = "smem"; self.defs = R[0]; self.uses = flat(R[1:])
            elif op in ("s_waitcnt", "s_nop", "s_barrier", "s_endpgm", "s_sleep", "s_setprio") or op.startswith(("s_cbranch", "s_branch")):
                self.kind = "sctl"
            else:
                self.kind = "salu"
                if op.startswith("s_cmp") or op.startswith("s_bitcmp"):
                    self.uses = flat(R)
                else:
                    self.defs = R[0]; self.uses = flat(R[1:])
                    if "saveexec" in op: self.defs = self.defs + regs_of("exec"); self.uses += regs_of("exec")
        else:
            raise Exception("unknown instruction: " + text)
    def states(self):
        if self.kind in ("label", "dir"): return 0
        if self.op == "s_nop":
            return int(self.text.split(";")[0].split()[1], 0) + 1
        return 1

def need(prod, cons):
    n = 0
    pd = set(prod.defs)
    vdefs = set(r for r in pd if r[0] in "va")
    sdefs = set(r for r in pd if r[0] == "s")
    cu = set(cons.uses); cd = set(cons.defs)
    EX = set(regs_of("exec"))
    if prod.kind == "valu":
        if sdefs:
            if cons.kind == "vmem" and (sdefs & cu): n = max(n, 5)
            if cons.kind in ("valu", "mfma") and (sdefs & cu):
                n = max(n, 4 if cons.base in ("v_readlane_b32", "v_writelane_b32", "v_div_fmas_f32") else 2)
            if (sdefs & EX):
                if cons.kind == "valu" and cons.dpp: n = max(n, 5)
                if cons.kind == "valu" and (cons.base.startswith(("v_readlane", "v_readfirstlane", "v_writelane", "v_permlane"))): n = max(n, 4)
                if cons.kind == "mfma": n = max(n, 4)
            if cons.kind in ("salu", "sctl", "smem") and (sdefs & cu): n = max(n, 1)
        if vdefs:
            if cons.kind == "valu" and (vdefs & cu):
                if cons.dpp: n = max(n, 2)
                if cons.base in ("v_readlane_b32", "v_readfirstlane_b32"): n = max(n, 1)
                if cons.base.startswith("v_permlane"): n = max(n, 2)
                if prod.trans and not cons.trans: n = max(n, 1)
                if prod.op.endswith("_sdwa") or any(m.startswith("op_sel") for m in prod.mods) and not prod.base.startswith("v_pk_"): n = max(n, 1)
                if prod.base.startswith("v_dot2") and not (cons.base == prod.base): n = max(n, 3)
                if prod.base.startswith("v_dot2") and cons.base == prod.base:
                    ab = set(cons.uses) - set(cons.defs)
                    if vdefs & ab: n = max(n, 3)
            if cons.kind == "valu" and prod.base.startswith("v_dot2") and cons.base != prod.base and (vdefs & cd): n = max(n, 3)
            if cons.kind in ("vmem", "ds") and prod.base.startswith("v_dot2") and (vdefs & cu): n = max(n, 3)
            if cons.kind in ("vmem", "ds") and prod.trans and (vdefs & cu): n = max(n, 1)
            if cons.kind == "mfma" and (vdefs & cu): n = max(n, 2 if not prod.base.startswith("v_dot2") else 3)
    if prod.kind == "salu":
        if (("s", 124) in sdefs) and cons.kind == "vmem" and getattr(cons, "lds", False): n = max(n, 1)
        if (("s", 124) in sdefs) and cons.kind == "ds" and "addtid" in cons.op: n = max(n, 1)
    if prod.kind == "vmem" and prod.storedata:
        if set(prod.storedata) & cd:
            n = max(n, 2)
    if prod.kind == "mfma":
        p = prod.passes
        idx = {2: 0, 4: 1, 8: 2, 16: 3}[p]
        if cons.kind == "mfma":
            if vdefs & set(cons.srcC):
                if cons.srcC == prod.defs and cons.passes == p: n = max(n, [2, 0, 0, 0][idx])
                else: n = max(n, [4, 6, 10, 18][idx])
            if vdefs & set(cons.srcAB): n = max(n, [5, 8, 12, 20][idx])
            if (vdefs & cd) and not (vdefs & set(cons.srcC)): n = max(n, [5, 8, 12, 20][idx])
        elif cons.kind in ("valu", "vmem", "ds"):
            if vdefs & (cu | cd): n = max(n, [5, 8, 12, 20][idx])
        if cons.kind in ("valu",) and (set(prod.srcC) & cd): n = max(n, [1, 3, 7, 15][idx])
    return n

STAMPS = [False]
class Asm:
    def __init__(self):
        self.lines = []
        self.nst = 0
    def stamp(self, i=None):
        if not STAMPS[0]: return
        if i is None: i = self.nst
        self.nst = i + 1
        self.I("s_memrealtime s[%d:%d]" % (70 + 2 * i, 71 + 2 * i))
    def stamp_flush(self, kidx, n=None):
        if not STAMPS[0]: return
        self.I("s_waitcnt vmcnt(0)")
        self.stamp()
        n = self.nst
        self.I("s_lshl_b32 s68, s2, 2")
        self.I("s_add_u32 s68, s68, s3")
        self.I("s_lshl_b32 s68, s68, 7")
        self.I("s_add_u32 s68, s68, %d" % (kidx << 18))
        self.I("s_mov_b64 exec, 1")
        self.I("v_mov_b32 v2, s68")
        self.I("s_waitcnt lgkmcnt(0)")
        for i in range(n):
            self.I("v_mov_b32 v0, s%d" % (70 + 2 * i))
            self.I("v_mov_b32 v1, s%d" % (71 + 2 * i))
            self.I("global_store_dwordx2 v2, v[0:1], s[40:41] offset:%d" % (8 * i))
            self.I("s_nop 1")
    def I(self, s):
        for l in s.strip().split("\n"):
            l = l.strip()
            if l: self.lines.append(l)
    def L(self, name):
        self.lines.append(name + ":")
    def C(self, s):
        self.lines.append("; " + s)
    def finalize(self):
        ins = []
        for l in self.lines:
            if l.startswith(";"):
                o = Ins(".c"); o.text = l; ins.append(o)
            else:
                ins.append(Ins(l))
        out = []
        W = 24
        labels = {}
        def required(hist, c):
            dist = 0; extra = 0
            for p in reversed(hist):
                if dist >= W: break
                if p.kind not in ("label", "dir"):
                    nd = need(p, c)
                    if nd > dist: extra = max(extra, nd - dist)
                dist += p.states()
            return extra
        for c in ins:
            if c.kind in ("label", "dir"):
                if c.kind == "label": labels[c.text.split(":")[0]] = len(out)
                out.append(c); continue
            e = required(out[-3 * W:], c)
            while e > 0:
                k = min(e, 16)
                out.append(Ins("s_nop %d" % (k - 1))); e -= k
            out.append(c)
        for i, c in enumerate(out):
            if c.op.startswith(("s_cbranch", "s_branch")):
                tgt = c.text.split(";")[0].split()[1]
                if tgt not in labels: raise Exception("unknown label " + tgt)
                hist = list(out[max(0, i - 3 * W): i + 1])
                j = labels[tgt]; d = 0
                while j < len(out) and d < W:
                    t = out[j]
                    if t.kind not in ("label", "dir"):
                        e = required(hist, t)
                        if e > 0:
                            raise Exception("hazard across branch %s -> %s needs %d more states" % (c.text, t.text, e))
                        d += t.states()
                        if t.op in ("s_branch", "s_endpgm"): break
                    hist.append(t); j += 1
        maxv = max([r[1] for c in out for r in c.defs + c.uses if r[0] == "v"] + [0])
        maxa = max([r[1] for c in out for r in c.defs + c.uses if r[0] == "a"] + [-1])
        maxs = max([r[1] for c in out for r in c.defs + c.uses if r[0] == "s" and r[1] < 102] + [0])
        return [c.text for c in out], maxv, maxa, maxs

def kernel_text(name, asm):
    lines, maxv, maxa, maxs = asm.finalize()
    acc = (maxv + 1 + 3) // 4 * 4
    nfv = acc + maxa + 1 if maxa >= 0 else maxv + 1
    body = ".globl %s\n.p2align 8\n.type %s,@function\n%s:\n" % (name, name, name)
    body += "\n".join(("  " + l if not l.endswith(":") else l) for l in lines) + "\n"
    desc = """.p2align 6
.amdhsa_kernel %s
  .amdhsa_next_free_vgpr %d
  .amdhsa_next_free_sgpr %d
  .amdhsa_accum_offset %d
  .amdhsa_group_segment_fixed_size 0
  .amdhsa_kernarg_size 112
  .amdhsa_user_sgpr_count 2
  .amdhsa_user_sgpr_kernarg_segment_ptr 1
  .amdhsa_system_sgpr_workgroup_id_x 1
.end_amdhsa_kernel
""" % (name, nfv, max(maxs + 1, 16), acc)
    return body, desc, dict(vgpr=maxv + 1, agpr=maxa + 1, sgpr=maxs + 1, n=len(lines))
```

```python
from asmlib import *
from layout import *
from k_p0 import load_kernargs, ws_base

CONV_GRID = 256
KSTR = 35072
UB = 0
USTR = 4608
YB = UB + 2 * USTR
KB0 = YB + 4 * 8192
CONV_LDS = KB0 + 2 * KSTR
CS = [9, 2, 3, 6, 7, 11, 14, 15]
CSPACK = sum(c << (4 * i) for i, c in enumerate(CS))

def bf_round_pair(a, x, y):
    a.I("v_cvt_pk_bf16_f32 v%d, v%d, v%d" % (x, x, y))
    a.I("v_and_b32 v%d, 0xffff0000, v%d" % (y, x))
    a.I("v_lshlrev_b32 v%d, 16, v%d" % (x, x))

def gen_conv(tag, XIN, STIN, XOUT, kidx=0):
    a = Asm()
    a.stamp()
    load_kernargs(a)
    a.I("v_lshrrev_b32 v1, 6, v0")
    a.I("v_and_b32 v2, 63, v0")
    a.I("v_readfirstlane_b32 s3, v1")
    a.I("s_cmp_ge_u32 s2, %d" % CONV_GRID)
    a.I("s_cbranch_scc1 %s_end" % tag)
    a.I("s_lshr_b32 s4, s3, 1")
    a.I("s_and_b32 s5, s3, 1")
    a.I("s_lshl_b32 s6, s2, 1")
    a.I("v_lshlrev_b32 v3, 4, v0")
    a.I("v_lshlrev_b32 v4, 6, v0")
    a.I("v_lshlrev_b32 v5, 4, v2")
    a.I("s_lshl_b32 s7, s6, 12")
    a.I("s_waitcnt lgkmcnt(0)")
    a.stamp()
    ws_base(a, 44, XIN, 7)
    ws_base(a, 46, STIN)
    ws_base(a, 52, XOUT, 7)
    for q in range(4):
        a.I("global_load_dwordx4 v[%d:%d], v4, s[46:47] offset:%d" % (8 + 4 * q, 11 + 4 * q, 16 * q))
    a.I("global_load_dwordx4 v[24:27], v3, s[44:45]")
    a.I("v_add_u32 v6, 4096, v3")
    a.I("global_load_dwordx4 v[28:31], v6, s[44:45]")
    a.I("s_lshl_b32 s8, s2, 2")
    a.I("s_load_dword s9, %s, s8" % sp(P_DSK))
    a.I("s_add_u32 s48, s%d, 0x%x" % (P_WS, KC))
    a.I("s_addc_u32 s49, s%d, 0" % (P_WS + 1))
    a.I("s_mov_b32 s50, 0x%x" % (512 * KC_CH))
    a.I("s_mov_b32 s51, 0x20000")
    a.I("s_add_u32 s10, s6, s4")
    a.I("s_mul_i32 s10, s10, %d" % KC_CH)
    a.I("s_mul_i32 s11, s4, %d" % KSTR)
    a.I("s_add_u32 s11, s11, %d" % KB0)
    a.I("s_mov_b32 s15, 0x%x" % CSPACK)
    for i in range(4):
        a.I("s_lshl_b32 s12, s5, 2")
        a.I("s_add_u32 s12, s12, %d" % i)
        a.I("s_lshl_b32 s13, s12, 2")
        a.I("s_lshr_b32 s13, s15, s13")
        a.I("s_and_b32 s13, s13, 15")
        a.I("s_mul_i32 s14, s12, 272")
        a.I("s_add_u32 s13, s13, s14")
        a.I("s_lshl_b32 s13, s13, 4")
        a.I("s_add_u32 m0, s13, s11")
        a.I("s_lshl_b32 s14, s5, 3")
        a.I("s_add_u32 s14, s14, s10")
        a.I("s_add_u32 s14, s14, %d" % (2 * (i & ~1) + (i & 1) * KC_COPY))
        for q in range(4):
            a.I("buffer_load_dwordx4 v5, s[48:51], s14 offen offset:%d lds" % (1024 * q))
    a.I("v_and_b32 v32, 7, v2")
    a.I("v_bfe_u32 v33, v2, 3, 1")
    a.I("v_and_b32 v34, 1, v32")
    a.I("v_mov_b32 v35, %d" % KC_COPY)
    a.I("v_mul_u32_u24 v34, v34, v35")
    a.I("v_and_b32 v35, 6, v32")
    a.I("v_lshl_add_u32 v34, v35, 1, v34")
    a.I("v_lshl_add_u32 v34, v33, 4, v34")
    a.I("v_add_u32 v34, 4096, v34")
    a.I("buffer_load_dwordx4 v[36:39], v34, s[48:51], s10 offen")
    a.I("v_lshlrev_b32 v35, 2, v32")
    a.I("v_lshrrev_b32 v35, v35, s15")
    a.I("v_and_b32 v35, 15, v35")
    a.I("v_mov_b32 v34, 272")
    a.I("v_mad_u32_u24 v35, v32, v34, v35")
    a.I("v_add3_u32 v35, v35, v33, 64")
    a.I("v_add_u32 v35, 192, v35")
    a.I("v_lshl_add_u32 v35, v35, 4, s11")
    for r in range(4): a.I("v_mov_b32 v%d, 0" % (40 + r))
    a.I("v_lshrrev_b32 v44, 5, v2")
    a.I("v_mov_b32 v45, %d" % USTR)
    a.I("v_mul_u32_u24 v44, v44, v45")
    a.I("v_and_b32 v45, 31, v2")
    a.I("v_lshl_add_u32 v44, v45, 4, v44")
    a.I("ds_write_b128 v44, v[40:43] offset:%d" % UB)
    a.I("v_and_b32 v40, 15, v2")
    a.I("v_lshrrev_b32 v41, 4, v2")
    a.I("v_sub_u32 v42, 0, v40")
    a.I("v_and_b32 v42, 7, v42")
    a.I("v_add_u32 v43, v40, v42")
    a.I("v_lshrrev_b32 v43, 3, v43")
    a.I("v_lshlrev_b32 v44, 2, v42")
    a.I("v_lshrrev_b32 v44, v44, s15")
    a.I("v_and_b32 v44, 15, v44")
    a.I("v_mad_u32_u24 v44, v42, v34, v44")
    a.I("v_add_u32 v44, v44, v41")
    a.I("v_sub_u32 v44, v44, v43")
    a.I("s_lshl_b32 s12, s5, 8")
    a.I("s_sub_u32 s13, s11, s12")
    a.I("s_add_u32 s13, s13, %d" % (16 * 254 - 64 * 3 - 512 * 7))
    a.I("v_lshl_add_u32 v6, v44, 4, s13")
    a.I("s_mul_i32 s13, s4, %d" % USTR)
    a.I("s_sub_u32 s13, s13, s12")
    a.I("s_add_u32 s13, s13, %d" % (UB + 480 - 192))
    a.I("v_lshlrev_b32 v7, 5, v40")
    a.I("v_lshl_add_u32 v7, v41, 4, v7")
    a.I("v_add_u32 v7, s13, v7")
    a.I("s_waitcnt vmcnt(19)")
    a.stamp()
    a.I("s_mov_b32 s12, 0x3b000000")
    a.I("v_mov_b32 v47, 0x3727c5ac")
    for t in range(8):
        s_, q_ = 8 + 2 * t, 9 + 2 * t
        a.I("v_mul_f32 v%d, s12, v%d" % (s_, s_))
        a.I("v_mul_f32 v%d, s12, v%d" % (q_, q_))
        a.I("v_fma_f32 v%d, -v%d, v%d, v%d" % (q_, s_, s_, q_))
        a.I("v_max_f32 v%d, 0, v%d" % (q_, q_))
        bf_round_pair(a, s_, q_)
        a.I("v_add_f32 v%d, v47, v%d" % (q_, q_))
    for t in range(0, 8, 2):
        bf_round_pair(a, 9 + 2 * t, 11 + 2 * t)
    for t in range(8): a.I("v_sqrt_f32 v%d, v%d" % (9 + 2 * t, 9 + 2 * t))
    for t in range(0, 8, 2):
        bf_round_pair(a, 9 + 2 * t, 11 + 2 * t)
    for t in range(8): a.I("v_rcp_f32 v%d, v%d" % (9 + 2 * t, 9 + 2 * t))
    a.I("s_waitcnt vmcnt(17) lgkmcnt(0)")
    a.I("s_lshl_b32 s13, s9, 16")
    a.I("s_and_b32 s14, s9, 0xffff0000")
    for ch in range(2):
        X = 192 + 8 * ch; SK = 208 + 8 * ch; T = 48
        for q in range(4):
            a.I("v_lshlrev_b32 v%d, 16, v%d" % (X + 2 * q, 24 + 4 * ch + q))
            a.I("v_and_b32 v%d, 0xffff0000, v%d" % (X + 2 * q + 1, 24 + 4 * ch + q))
        for t in range(8):
            a.I("v_sub_f32 v%d, v%d, v%d" % (T + t, X + t, 8 + 2 * t))
        for t in range(0, 8, 2): bf_round_pair(a, T + t, T + t + 1)
        for t in range(8):
            a.I("v_mul_f32 v%d, v%d, v%d" % (T + t, T + t, 9 + 2 * t))
        U = 56 + 4 * ch
        for q in range(4):
            a.I("v_cvt_pk_bf16_f32 v%d, v%d, v%d" % (U + q, T + 2 * q, T + 2 * q + 1))
        a.I("ds_write_b128 v3, v[%d:%d] offset:%d" % (U, U + 3, UB + ch * USTR + 512))
        for q in range(4):
            a.I("v_lshlrev_b32 v%d, 16, v%d" % (SK + 2 * q, U + q))
            a.I("v_and_b32 v%d, 0xffff0000, v%d" % (SK + 2 * q + 1, U + q))
        for t in range(8):
            a.I("v_mul_f32 v%d, s%d, v%d" % (SK + t, 13 + ch, SK + t))
        for t in range(0, 8, 2): bf_round_pair(a, SK + t, SK + t + 1)
    a.stamp()
    a.I("s_waitcnt vmcnt(0)")
    a.stamp()
    a.I("ds_write_b128 v35, v[36:39]")
    a.I("s_waitcnt lgkmcnt(0)")
    a.I("s_barrier")
    a.stamp()
    def A(set_, i): return 64 + 64 * set_ + 4 * i
    def B(set_, i): return 96 + 64 * set_ + 4 * i
    def loads(rp):
        s_ = rp & 1
        out = []
        for m in range(8):
            out.append("ds_read_b128 v[%d:%d], v6 offset:%d" % (A(s_, m), A(s_, m) + 3, 512 * (7 - m) + 64 * (3 - rp)))
            out.append("ds_read_b128 v[%d:%d], v7 offset:%d" % (B(s_, m), B(s_, m) + 3, 512 * m + 64 * (3 - rp)))
        return out
    pairs = sorted([(x, y) for x in range(8) for y in range(8) if x + y <= 7], key=lambda p: (max(p), p[0] + p[1]))
    touched = set()
    for l in loads(0)[:14]: a.I(l)
    pend0 = loads(0)[14:]
    for rp in range(4):
        s_ = rp & 1
        nxt = loads(rp + 1) if rp < 3 else []
        lastm = -1
        for n, (x, y) in enumerate(pairs):
            if rp == 0:
                m = max(x, y)
                if m > lastm:
                    if m == 0:
                        a.I("s_waitcnt lgkmcnt(12)")
                        for l in pend0: a.I(l)
                    else:
                        a.I("s_waitcnt lgkmcnt(%d)" % (16 - 2 * m - 2))
                    lastm = m
            t = x + y
            acc = 32 + 4 * t
            c = "v[%d:%d]" % (acc, acc + 3) if t in touched else "0"
            touched.add(t)
            a.I("v_mfma_f32_16x16x32_bf16 v[%d:%d], v[%d:%d], v[%d:%d], %s" % (acc, acc + 3, A(s_, x), A(s_, x) + 3, B(s_, y), B(s_, y) + 3, c))
            if rp > 0 and nxt and n % 2 == 1 and n < 33:
                a.I(nxt.pop(0))
        if rp == 0:
            for l in nxt[:15]: a.I(l)
            a.I(nxt[15])
        if rp < 3:
            a.I("s_waitcnt lgkmcnt(0)")
    a.stamp()
    a.I("s_lshl_b32 s12, s3, 13")
    a.I("s_add_u32 s12, s12, %d" % YB)
    a.I("v_add_u32 v5, s12, v5")
    for t in range(8):
        a.I("ds_write_b128 v5, v[%d:%d] offset:%d" % (32 + 4 * t, 35 + 4 * t, 1024 * t))
    a.I("v_lshrrev_b32 v4, 5, v0")
    a.I("v_lshlrev_b32 v4, 10, v4")
    a.I("v_bfe_u32 v6, v0, 1, 4")
    a.I("v_lshl_add_u32 v4, v6, 4, v4")
    a.I("v_and_b32 v6, 1, v0")
    a.I("v_lshl_add_u32 v4, v6, 9, v4")
    a.I("v_add_u32 v4, %d, v4" % YB)
    a.I("s_waitcnt lgkmcnt(0)")
    a.I("s_barrier")
    a.stamp()
    for w in range(4):
        a.I("ds_read_b128 v[%d:%d], v4 offset:%d" % (64 + 8 * w, 67 + 8 * w, 8192 * w))
        a.I("ds_read_b128 v[%d:%d], v4 offset:%d" % (68 + 8 * w, 71 + 8 * w, 8192 * w + 256))
    a.I("v_add_u32 v6, 4096, v3")
    for ch in range(2):
        a.I("s_waitcnt lgkmcnt(%d)" % (4 - 4 * ch))
        Y = 64 + 16 * ch; X = 192 + 8 * ch; SK = 208 + 8 * ch
        for t in range(8): a.I("v_add_f32 v%d, v%d, v%d" % (Y + t, Y + t, Y + 8 + t))
        for t in range(0, 8, 2): bf_round_pair(a, Y + t, Y + t + 1)
        for t in range(8): a.I("v_add_f32 v%d, v%d, v%d" % (Y + t, Y + t, SK + t))
        for t in range(0, 8, 2): bf_round_pair(a, Y + t, Y + t + 1)
        for t in range(8): a.I("v_add_f32 v%d, v%d, v%d" % (Y + t, Y + t, X + t))
        for q in range(4): a.I("v_cvt_pk_bf16_f32 v%d, v%d, v%d" % (Y + 8 + q, Y + 2 * q, Y + 2 * q + 1))
        a.I("global_store_dwordx4 v%d, v[%d:%d], s[52:53]" % (3 if ch == 0 else 6, Y + 8, Y + 11))
    a.stamp_flush(kidx)
    a.L("%s_end" % tag)
    a.I("s_endpgm")
    return a
```

```python
from asmlib import *
from layout import *
from k_p0 import load_kernargs, ws_base
from k_conv import bf_round_pair

G1_GRID = 256
PAIR = 61440
G1_LDS = 2 * PAIR

def gen_g1(tag, XIN, ACT, kidx=0):
    a = Asm()
    a.stamp()
    load_kernargs(a)
    a.I("v_lshrrev_b32 v1, 6, v0")
    a.I("v_and_b32 v2, 63, v0")
    a.I("v_readfirstlane_b32 s3, v1")
    a.I("s_cmp_ge_u32 s2, %d" % G1_GRID)
    a.I("s_cbranch_scc1 %s_end" % tag)
    a.I("s_and_b32 s4, s2, 7")
    a.I("s_lshr_b32 s5, s2, 3")
    a.I("s_lshr_b32 s6, s4, 1")
    a.I("s_lshl_b32 s6, s6, 2")
    a.I("s_and_b32 s7, s5, 3")
    a.I("s_add_u32 s6, s6, s7")
    a.I("s_and_b32 s7, s4, 1")
    a.I("s_lshl_b32 s7, s7, 3")
    a.I("s_lshr_b32 s5, s5, 2")
    a.I("s_add_u32 s7, s7, s5")
    a.I("v_lshrrev_b32 v3, 4, v2")
    a.I("s_and_b32 s8, s3, 1")
    a.I("s_lshl_b32 s8, s8, 2")
    a.I("v_add_u32 v4, s8, v3")
    a.I("v_bfe_u32 v5, v2, 1, 3")
    a.I("v_xor_b32 v5, v5, v4")
    a.I("v_lshlrev_b32 v5, 5, v5")
    a.I("v_and_b32 v6, 1, v2")
    a.I("v_lshl_add_u32 v5, v6, 4, v5")
    a.I("v_lshl_add_u32 v5, v3, 12, v5")
    a.I("s_lshl_b32 s8, s6, 8")
    a.I("v_add_u32 v5, s8, v5")
    a.I("v_lshlrev_b32 v6, 4, v2")
    a.I("s_waitcnt lgkmcnt(0)")
    a.stamp()
    for (r, off, sz) in ((44, XIN, 2 * L * D), (48, W1F, 2 * D * F), (52, ACT, 2 * L * F)):
        a.I("s_add_u32 s%d, s%d, 0x%x" % (r, P_WS, off))
        a.I("s_addc_u32 s%d, s%d, 0" % (r + 1, P_WS + 1))
        a.I("s_mov_b32 s%d, 0x%x" % (r + 2, sz))
        a.I("s_mov_b32 s%d, 0x20000" % (r + 3))
    a.I("s_lshl_b32 s9, s3, 14")
    a.I("s_mul_i32 s10, s7, 114688")
    a.I("s_lshl_b32 s11, s3, 10")
    a.I("s_add_u32 s10, s10, s11")
    def issue_pair(p):
        pb = (p & 1) * PAIR
        def xi(sub, i):
            a.I("s_add_u32 m0, s11, %d" % (pb + sub * 16384 + i * 4096))
            a.I("s_add_u32 s12, s9, %d" % ((128 * p + 64 * sub + 16 * i) * 4096))
            a.I("buffer_load_dwordx4 v5, s[44:47], s12 offen lds")
        def wi(i):
            a.I("s_add_u32 m0, s11, %d" % (pb + 32768 + i * 4096))
            a.I("s_add_u32 s12, s10, %d" % (p * 28672 + i * 4096))
            a.I("buffer_load_dwordx4 v6, s[48:51], s12 offen lds")
        for i in range(4): xi(0, i)
        for i in range(4): wi(i)
        for i in range(4): xi(1, i)
        for i in range(4, 7): wi(i)
    issue_pair(0); issue_pair(1)
    a.I("v_lshrrev_b32 v3, 2, v2")
    a.I("v_and_b32 v4, 7, v3")
    a.I("s_lshl_b32 s8, s3, 1")
    a.I("v_xor_b32 v7, s8, v4")
    a.I("v_xor_b32 v8, 1, v7")
    a.I("v_and_b32 v4, 3, v2")
    a.I("v_lshlrev_b32 v4, 3, v4")
    a.I("v_lshl_add_u32 v4, v3, 8, v4")
    a.I("v_lshl_add_u32 v7, v7, 5, v4")
    a.I("v_lshl_add_u32 v8, v8, 5, v4")
    a.I("v_add_u32 v9, %d, v7" % PAIR)
    a.I("v_add_u32 v10, %d, v8" % PAIR)
    a.I("v_add_u32 v11, %d, v6" % PAIR)
    for r in range(12, 20): a.I("v_mov_b32 v%d, 0" % r)
    a.I("s_mov_b32 s13, 0x3f803f80")
    ACC = 20
    SET = [76, 112]
    CC = 148
    def acc(ft, tt): return ACC + 4 * (2 * ft + tt)
    def loads(k):
        p = k >> 2; sub = (k >> 1) & 1; ksl = k & 1
        S = SET[k & 1]
        xa = (7, 8) if (p & 1) == 0 else (9, 10)
        wa = 6 if (p & 1) == 0 else 11
        out = []
        for tt in range(2):
            for n in range(2):
                out.append("ds_read_b64_tr_b16 v[%d:%d], v%d offset:%d" % (S + 4 * tt + 2 * n, S + 4 * tt + 2 * n + 1, xa[tt], sub * 16384 + ksl * 8192 + n * 4096))
        for ft in range(7):
            out.append("ds_read_b128 v[%d:%d], v%d offset:%d" % (S + 8 + 4 * ft, S + 11 + 4 * ft, wa, 32768 + ((2 * sub + ksl) * 7 + ft) * 1024))
        return out
    def compute(k, inter):
        S = SET[k & 1]
        dots = []
        for tt in range(2):
            for q in range(4):
                c = 4 * (q & 1)
                dots.append("v_dot2c_f32_bf16 v%d, s13, v%d" % (12 + 2 * tt + c, S + 4 * tt + q))
                dots.append("v_dot2c_f32_bf16 v%d, v%d, v%d" % (13 + 2 * tt + c, S + 4 * tt + q, S + 4 * tt + q))
        n = 0
        for ft in range(7):
            for tt in range(2):
                A_ = acc(ft, tt)
                a.I("v_mfma_f32_16x16x32_bf16 v[%d:%d], v[%d:%d], v[%d:%d], %s" % (A_, A_ + 3, S + 8 + 4 * ft, S + 11 + 4 * ft, S + 4 * tt, S + 4 * tt + 3, "0" if k == 0 else "v[%d:%d]" % (A_, A_ + 3)))
                if inter: a.I(inter.pop(0))
                if dots: a.I(dots.pop(0))
                if n >= 12 and dots: a.I(dots.pop(0))
                n += 1
        for d in dots: a.I(d)
        for l in inter: a.I(l)
    vm = {0: 22, 2: 15, 4: 7, 6: 15, 8: 7, 10: 29, 12: 21, 14: 14}
    for k in range(17):
        if k < 16 and k % 2 == 0:
            a.I("s_waitcnt vmcnt(%d)" % vm[k])
            a.I("s_barrier")
            a.stamp()
            if k == 4: issue_pair(2)
            if k == 8:
                issue_pair(3)
                a.I("s_mul_i32 s12, s7, 448")
                a.I("v_lshrrev_b32 v3, 4, v2")
                a.I("v_lshl_add_u32 v3, v3, 4, s12")
                ws_base(a, 56, CS1)
                ws_base(a, 58, B1F)
                for ft in range(7):
                    a.I("global_load_dwordx4 v[%d:%d], v3, s[56:57] offset:%d" % (CC + 4 * ft, CC + 4 * ft + 3, 64 * ft))
                    a.I("global_load_dwordx4 v[%d:%d], v3, s[58:59] offset:%d" % (CC + 28 + 4 * ft, CC + 28 + 4 * ft + 3, 64 * ft))
        ld = loads(k) if k < 16 else []
        if k == 0:
            for l in ld: a.I(l)
        else:
            compute(k - 1, ld)
        if k < 16: a.I("s_waitcnt lgkmcnt(0)")
    a.stamp()
    for r in range(4): a.I("v_add_f32 v%d, v%d, v%d" % (12 + r, 12 + r, 16 + r))
    for sw in ("v_permlane32_swap_b32", "v_permlane16_swap_b32"):
        for r in range(4): a.I("v_mov_b32 v%d, v%d" % (16 + r, 12 + r))
        for r in range(4): a.I("%s v%d, v%d" % (sw, 12 + r, 16 + r))
        for r in range(4): a.I("v_add_f32 v%d, v%d, v%d" % (12 + r, 12 + r, 16 + r))
    a.I("s_mov_b32 s12, 0x3b000000")
    a.I("v_mov_b32 v16, 0x3727c5ac")
    for tt in range(2):
        s_, q_ = 12 + 2 * tt, 13 + 2 * tt
        a.I("v_mul_f32 v%d, s12, v%d" % (s_, s_))
        a.I("v_mul_f32 v%d, s12, v%d" % (q_, q_))
        a.I("v_fma_f32 v%d, -v%d, v%d, v%d" % (q_, s_, s_, q_))
        a.I("v_max_f32 v%d, 0, v%d" % (q_, q_))
        bf_round_pair(a, s_, q_)
        a.I("v_add_f32 v%d, v16, v%d" % (q_, q_))
    bf_round_pair(a, 13, 15)
    a.I("v_sqrt_f32 v13, v13"); a.I("v_sqrt_f32 v15, v15")
    bf_round_pair(a, 13, 15)
    a.I("v_rcp_f32 v13, v13"); a.I("v_rcp_f32 v15, v15")
    a.I("v_mul_f32 v12, v12, v13"); a.I("v_mul_f32 v14, v14, v15")
    a.I("v_mov_b32 v16, 2.0"); a.I("v_mov_b32 v17, 0x%x" % LOG2E)
    a.I("s_mov_b32 s14, 0x41f00000")
    a.I("s_lshl_b32 s12, s6, 3")
    a.I("s_lshl_b32 s15, s3, 1")
    a.I("s_add_u32 s12, s12, s15")
    a.I("s_mul_i32 s12, s12, 57344")
    a.I("v_add_u32 v3, s12, v6")
    a.I("v_add_u32 v4, 57344, v3")
    a.I("s_mul_i32 s15, s7, 7")
    a.I("s_waitcnt vmcnt(0)")
    a.stamp()
    T0 = 76
    for ft in range(7):
        a.I("s_add_u32 s12, s15, %d" % ft)
        a.I("s_and_b32 s8, s12, 1")
        a.I("s_lshl_b32 s8, s8, 3")
        a.I("s_lshr_b32 s12, s12, 1")
        a.I("s_lshl_b32 s12, s12, 10")
        a.I("s_add_u32 s%d, s12, s8" % (60 + ft))
        for tt in range(2):
            st = 12 + 2 * tt
            T = T0 + 16 * ((2 * ft + tt) % 4)
            for h in range(2):
                A_ = acc(ft, tt) + 2 * h; c = CC + 4 * ft + 2 * h; b = c + 28
                H = T + 2 * h; W = T + 4 + 2 * h; N_ = T + 8 + 2 * h; Dn = T + 12 + 2 * h
                a.I("v_pk_fma_f32 v[%d:%d], v[%d:%d], v[%d:%d], v[%d:%d] op_sel:[0,0,0] op_sel_hi:[1,0,1] neg_lo:[0,1,0] neg_hi:[0,1,0]" % (H, H + 1, c, c + 1, st, st + 1, b, b + 1))
                a.I("v_pk_fma_f32 v[%d:%d], v[%d:%d], v[%d:%d], v[%d:%d] op_sel:[0,1,0] op_sel_hi:[1,1,1]" % (H, H + 1, A_, A_ + 1, st, st + 1, H, H + 1))
                a.I("v_pk_mul_f32 v[%d:%d], v[%d:%d], v[16:17] op_sel:[0,1] op_sel_hi:[1,1]" % (W, W + 1, H, H + 1))
                a.I("v_min_f32 v%d, s14, v%d" % (W, W))
                a.I("v_min_f32 v%d, s14, v%d" % (W + 1, W + 1))
            for e in range(4): a.I("v_exp_f32 v%d, v%d" % (T + 4 + e, T + 4 + e))
            for h in range(2):
                H = T + 2 * h; W = T + 4 + 2 * h; N_ = T + 8 + 2 * h; Dn = T + 12 + 2 * h
                a.I("v_pk_add_f32 v[%d:%d], v[%d:%d], v[16:17] op_sel:[0,0] op_sel_hi:[1,0]" % (N_, N_ + 1, W, W + 1))
                a.I("v_pk_mul_f32 v[%d:%d], v[%d:%d], v[%d:%d]" % (N_, N_ + 1, N_, N_ + 1, W, W + 1))
                a.I("v_pk_add_f32 v[%d:%d], v[%d:%d], v[16:17] op_sel:[0,0] op_sel_hi:[1,0]" % (Dn, Dn + 1, N_, N_ + 1))
                a.I("v_pk_mul_f32 v[%d:%d], v[%d:%d], v[%d:%d]" % (N_, N_ + 1, N_, N_ + 1, H, H + 1))
            for e in range(4): a.I("v_rcp_f32 v%d, v%d" % (T + 12 + e, T + 12 + e))
            for h in range(2):
                N_ = T + 8 + 2 * h; Dn = T + 12 + 2 * h
                a.I("v_pk_mul_f32 v[%d:%d], v[%d:%d], v[%d:%d]" % (N_, N_ + 1, N_, N_ + 1, Dn, Dn + 1))
            a.I("v_cvt_pk_bf16_f32 v%d, v%d, v%d" % (T + 4, T + 8, T + 9))
            a.I("v_cvt_pk_bf16_f32 v%d, v%d, v%d" % (T + 5, T + 10, T + 11))
            a.I("buffer_store_dwordx2 v[%d:%d], v%d, s[52:55], s%d offen" % (T + 4, T + 5, 3 + tt, 60 + ft))
    a.stamp()
    a.stamp_flush(kidx)
    a.L("%s_end" % tag)
    a.I("s_endpgm")
    return a
```

```python
from asmlib import *
from layout import *
from k_p0 import load_kernargs, ws_base
from k_conv import bf_round_pair

G2_GRID = 256
G2_LDS = 49152 + 4 * 2048

def gen_g2(tag, ACT, XIN, XOUT, STOUT, final, kidx=0):
    a = Asm()
    a.stamp()
    load_kernargs(a)
    a.I("v_lshrrev_b32 v1, 6, v0")
    a.I("v_and_b32 v2, 63, v0")
    a.I("v_readfirstlane_b32 s3, v1")
    a.I("s_cmp_ge_u32 s2, %d" % G2_GRID)
    a.I("s_cbranch_scc1 %s_end" % tag)
    a.I("s_and_b32 s4, s2, 7")
    a.I("s_lshr_b32 s5, s2, 3")
    a.I("s_lshl_b32 s6, s4, 2")
    a.I("s_and_b32 s7, s5, 3")
    a.I("s_add_u32 s6, s6, s7")
    a.I("s_lshr_b32 s7, s5, 2")
    a.I("v_lshlrev_b32 v3, 4, v2")
    a.I("v_mov_b32 v6, v3")
    a.I("s_mul_i32 s8, s3, 14336")
    a.I("v_and_b32 v4, 15, v2")
    a.I("v_lshrrev_b32 v5, 4, v2")
    a.I("v_lshlrev_b32 v7, 12, v4")
    a.I("v_lshl_add_u32 v7, v5, 3, v7")
    a.I("s_lshl_b32 s9, s7, 18")
    a.I("s_lshl_b32 s10, s6, 7")
    a.I("s_add_u32 s9, s9, s10")
    a.I("s_lshl_b32 s10, s3, 5")
    a.I("s_add_u32 s9, s9, s10")
    a.I("v_add_u32 v7, s9, v7")
    for b in range(1, 4): a.I("v_add_u32 v%d, 0x%x, v7" % (7 + b, b * 0x10000))
    a.I("s_waitcnt lgkmcnt(0)")
    a.stamp()
    ws_base(a, 44, XIN)
    for b in range(4):
        a.I("global_load_dwordx2 v[%d:%d], v%d, s[44:45]" % (12 + 2 * b, 13 + 2 * b, 7 + b))
    for i in range(4):
        a.I("s_add_u32 s10, s3, %d" % i)
        a.I("s_and_b32 s10, s10, 3")
        a.I("s_lshl_b32 s11, s6, 2")
        a.I("s_add_u32 s10, s10, s11")
        a.I("s_mul_i32 s10, s10, 57344")
        a.I("s_add_u32 s10, s10, s8")
        ws_base(a, 48 + 2 * i, ACT, 10)
        a.I("s_lshl_b32 s11, s7, 2")
        a.I("s_add_u32 s11, s11, %d" % i)
        a.I("s_mul_i32 s11, s11, 57344")
        a.I("s_add_u32 s11, s11, s8")
        ws_base(a, 56 + 2 * i, W2F, 11)
    BUF = 24
    NB = 7
    def fr(s, i): return BUF + 32 * (s % NB) + 4 * i
    def issue(s):
        if s and s % 4 == 0: a.I("v_add_u32 v3, 4096, v3")
        for i in range(4):
            a.I("global_load_dwordx4 v[%d:%d], v3, s[%d:%d] offset:%d" % (fr(s, i), fr(s, i) + 3, 48 + 2 * i, 49 + 2 * i, 1024 * (s % 4)))
            a.I("global_load_dwordx4 v[%d:%d], v3, s[%d:%d] offset:%d" % (fr(s, 4 + i), fr(s, 4 + i) + 3, 56 + 2 * i, 57 + 2 * i, 1024 * (s % 4)))
    for s in range(NB): issue(s)
    a.stamp()
    for s in range(14):
        a.I("s_waitcnt vmcnt(%d)" % (8 * (min(13, s + NB - 1) - s)))
        if s % 2 == 0: a.stamp()
        for i in range(4):
            for b in range(4):
                A_ = 4 * (4 * i + b)
                a.I("v_mfma_f32_16x16x32_bf16 a[%d:%d], v[%d:%d], v[%d:%d], %s" % (A_, A_ + 3, fr(s, i), fr(s, i) + 3, fr(s, 4 + b), fr(s, 4 + b) + 3, "0" if s == 0 else "a[%d:%d]" % (A_, A_ + 3)))
        if s + NB < 14: issue(s + NB)
    a.stamp()
    for i in range(1, 4):
        a.I("s_add_u32 s10, s3, %d" % i)
        a.I("s_and_b32 s10, s10, 3")
        a.I("s_mul_i32 s10, s10, 12288")
        a.I("v_add_u32 v%d, s10, v6" % (20 + i))
    a.I("s_mul_i32 s10, s3, 12288")
    a.I("v_add_u32 v20, s10, v6")
    for i in range(1, 4):
        for b in range(4):
            A_ = 4 * (4 * i + b)
            a.I("ds_write_b128 v%d, a[%d:%d] offset:%d" % (20 + i, A_, A_ + 3, (i - 1) * 4096 + b * 1024))
    for r in range(16): a.I("v_accvgpr_read_b32 v%d, a%d" % (24 + r, r))
    a.I("s_waitcnt lgkmcnt(0)")
    a.I("s_barrier")
    a.stamp()
    for i in range(3):
        for b in range(4):
            R = 40 + 16 * i + 4 * b
            a.I("ds_read_b128 v[%d:%d], v20 offset:%d" % (R, R + 3, i * 4096 + b * 1024))
    for i in range(3):
        a.I("s_waitcnt lgkmcnt(%d)" % (8 - 4 * i))
        for r in range(0, 16, 2):
            a.I("v_pk_add_f32 v[%d:%d], v[%d:%d], v[%d:%d]" % (24 + r, 25 + r, 24 + r, 25 + r, 40 + 16 * i + r, 41 + 16 * i + r))
    for r in range(0, 16, 2): bf_round_pair(a, 24 + r, 25 + r)
    for b in range(4):
        for h in range(2):
            a.I("v_lshlrev_b32 v%d, 16, v%d" % (40 + 4 * b + 2 * h, 12 + 2 * b + h))
            a.I("v_and_b32 v%d, 0xffff0000, v%d" % (41 + 4 * b + 2 * h, 12 + 2 * b + h))
    for r in range(0, 16, 2):
        a.I("v_pk_add_f32 v[%d:%d], v[%d:%d], v[%d:%d]" % (24 + r, 25 + r, 24 + r, 25 + r, 40 + r, 41 + r))
    for r in range(8):
        a.I("v_cvt_pk_bf16_f32 v%d, v%d, v%d" % (56 + r, 24 + 2 * r, 25 + 2 * r))
    if not final:
        ws_base(a, 44, XOUT)
        for b in range(4):
            a.I("global_store_dwordx2 v%d, v[%d:%d], s[44:45]" % (7 + b, 56 + 2 * b, 57 + 2 * b))
        for r in range(8):
            a.I("v_lshlrev_b32 v%d, 16, v%d" % (24 + 2 * r, 56 + r))
            a.I("v_and_b32 v%d, 0xffff0000, v%d" % (25 + 2 * r, 56 + r))
        for r in range(4):
            a.I("v_add_f32 v%d, v%d, v%d" % (40 + 2 * r, 24 + r, 28 + r))
            a.I("v_mul_f32 v%d, v%d, v%d" % (41 + 2 * r, 24 + r, 24 + r))
        for r in range(4):
            a.I("v_add_f32 v%d, v%d, v%d" % (40 + 2 * r, 40 + 2 * r, 32 + r))
            a.I("v_fmac_f32 v%d, v%d, v%d" % (41 + 2 * r, 28 + r, 28 + r))
        for r in range(4):
            a.I("v_add_f32 v%d, v%d, v%d" % (40 + 2 * r, 40 + 2 * r, 36 + r))
            a.I("v_fmac_f32 v%d, v%d, v%d" % (41 + 2 * r, 32 + r, 32 + r))
        for r in range(4):
            a.I("v_fmac_f32 v%d, v%d, v%d" % (41 + 2 * r, 36 + r, 36 + r))
        for sh in (8, 4, 2, 1):
            for r in range(8):
                a.I("v_add_f32_dpp v%d, v%d, v%d row_ror:%d row_mask:0xf bank_mask:0xf" % (40 + r, 40 + r, 40 + r, sh))
        for r in range(1, 8):
            a.I("v_cmp_eq_u32 vcc, %d, v4" % r)
            a.I("v_cndmask_b32 v40, v40, v%d, vcc" % (40 + r))
        a.I("s_lshl_b32 s10, s6, 9")
        a.I("s_lshl_b32 s11, s3, 7")
        a.I("s_add_u32 s10, s10, s11")
        a.I("v_lshlrev_b32 v41, 5, v5")
        a.I("v_lshl_add_u32 v41, v4, 2, v41")
        a.I("v_add_u32 v41, s10, v41")
        ws_base(a, 46, STOUT)
        a.I("s_mov_b32 exec_lo, 0x00ff00ff")
        a.I("s_mov_b32 exec_hi, 0x00ff00ff")
        a.I("global_atomic_add_f32 v41, v40, s[46:47]")
    else:
        a.I("s_lshl_b32 s10, s3, 11")
        a.I("s_add_u32 s10, s10, 49152")
        a.I("v_lshlrev_b32 v40, 5, v4")
        a.I("v_lshl_add_u32 v40, v5, 3, v40")
        a.I("v_add_u32 v40, s10, v40")
        for b in range(4):
            a.I("ds_write_b64 v40, v[%d:%d] offset:%d" % (56 + 2 * b, 57 + 2 * b, 512 * b))
        a.I("v_bfe_u32 v41, v2, 2, 2")
        a.I("v_lshl_add_u32 v41, v5, 4, v41")
        a.I("v_lshlrev_b32 v41, 5, v41")
        a.I("v_and_b32 v42, 3, v2")
        a.I("v_lshl_add_u32 v41, v42, 3, v41")
        a.I("v_add_u32 v41, s10, v41")
        a.I("s_waitcnt lgkmcnt(0)")
        for n in range(4):
            a.I("ds_read_b64_tr_b16 v[%d:%d], v41 offset:%d" % (24 + 2 * n, 25 + 2 * n, 128 * n))
        a.I("s_lshl_b32 s10, s6, 16")
        a.I("s_lshl_b32 s11, s3, 14")
        a.I("s_add_u32 s10, s10, s11")
        a.I("s_lshl_b32 s11, s7, 7")
        a.I("s_add_u32 s10, s10, s11")
        a.I("v_lshlrev_b32 v42, 10, v4")
        a.I("v_lshl_add_u32 v42, v5, 5, v42")
        a.I("v_add_u32 v42, s10, v42")
        a.I("s_waitcnt lgkmcnt(0)")
        a.I("global_store_dwordx4 v42, v[24:27], %s" % sp(P_OUT))
        a.I("global_store_dwordx4 v42, v[28:31], %s offset:16" % sp(P_OUT))
    a.stamp_flush(kidx)
    a.L("%s_end" % tag)
    a.I("s_endpgm")
    return a
```

```python
from asmlib import *
from layout import *

NK = 256; NT = 64; NW1 = 28; NW2 = 32
P0_GRID = NK + NT + NW1 + NW2
P0_LDS = 65536

def load_kernargs(a):
    a.I("s_load_dwordx16 s[16:31], s[0:1], 0")
    a.I("s_load_dwordx8 s[32:39], s[0:1], 64")
    a.I("s_load_dwordx4 s[40:43], s[0:1], 96")

def ws_base(a, dst, off, extra_sgpr=None):
    a.I("s_add_u32 s%d, s%d, 0x%x" % (dst, P_WS, off))
    a.I("s_addc_u32 s%d, s%d, 0" % (dst + 1, P_WS + 1))
    if extra_sgpr is not None:
        a.I("s_add_u32 s%d, s%d, s%d" % (dst, dst, extra_sgpr))
        a.I("s_addc_u32 s%d, s%d, 0" % (dst + 1, dst + 1))

def cmul(a, d, x, y):
    a.I("v_pk_mul_f32 v[%d:%d], v[%d:%d], v[%d:%d] op_sel:[0,0] op_sel_hi:[0,1]" % (d, d + 1, x, x + 1, y, y + 1))
    a.I("v_pk_fma_f32 v[%d:%d], v[%d:%d], v[%d:%d], v[%d:%d] op_sel:[1,1,0] op_sel_hi:[1,0,1] neg_lo:[0,1,0]" % (d, d + 1, x, x + 1, y, y + 1, d, d + 1))

def gen_p0(kidx=0):
    a = Asm()
    a.stamp()
    load_kernargs(a)
    a.I("v_lshrrev_b32 v1, 6, v0")
    a.I("v_and_b32 v2, 63, v0")
    a.I("v_readfirstlane_b32 s3, v1")
    a.I("s_cmp_ge_u32 s2, %d" % P0_GRID)
    a.I("s_cbranch_scc1 P0_end")
    a.I("s_cmp_ge_u32 s2, %d" % (NK + NT + NW1))
    a.I("s_cbranch_scc1 P0_w2")
    a.I("s_cmp_ge_u32 s2, %d" % (NK + NT))
    a.I("s_cbranch_scc1 P0_w1")
    a.I("s_cmp_ge_u32 s2, %d" % NK)
    a.I("s_cbranch_scc1 P0_tr")
    a.C("K generation role")
    ROW = 272; WB = 53 * ROW
    a.I("s_lshl_b32 s4, s2, 9")
    a.I("v_lshl_add_u32 v3, v0, 1, s4")
    a.I("s_lshl_b32 s5, s2, 2")
    a.I("s_waitcnt lgkmcnt(0)")
    a.stamp(1)
    a.I("global_load_ushort v4, v3, %s" % sp(P_LAR))
    a.I("global_load_ushort v5, v3, %s" % sp(P_AI))
    a.I("global_load_ushort v6, v3, %s" % sp(P_CR))
    a.I("global_load_ushort v7, v3, %s" % sp(P_CI))
    a.I("s_load_dword s6, %s, s5" % sp(P_LDT))
    a.I("s_mul_i32 s7, s3, %d" % WB)
    a.I("v_lshl_add_u32 v8, v2, 2, s7")
    a.I("v_and_b32 v9, 31, v2")
    a.I("v_lshrrev_b32 v10, 5, v2")
    a.I("v_min_u32 v11, 20, v9")
    a.I("v_mov_b32 v12, %d" % ROW)
    a.I("v_mul_u32_u24 v13, v9, v12")
    a.I("v_lshl_add_u32 v13, v10, 4, v13")
    a.I("v_add_u32 v13, s7, v13")
    a.I("v_mul_u32_u24 v14, v11, v12")
    a.I("v_lshl_add_u32 v14, v10, 4, v14")
    a.I("v_add_u32 v14, s7, v14")
    a.I("v_lshlrev_b32 v15, 8, v11")
    a.I("v_add_u32 v16, %d, v15" % ((4 - 9 * 256) & 0xffffffff))
    a.I("v_cmp_le_u32 vcc, 9, v11")
    a.I("v_cndmask_b32 v17, v15, v16, vcc")
    a.I("v_add_u32 v16, %d, v15" % ((2 - 13 * 256) & 0xffffffff))
    a.I("v_cmp_le_u32 vcc, 13, v11")
    a.I("v_cndmask_b32 v17, v17, v16, vcc")
    a.I("v_add_u32 v16, %d, v15" % ((6 - 15 * 256) & 0xffffffff))
    a.I("v_cmp_le_u32 vcc, 15, v11")
    a.I("v_cndmask_b32 v17, v17, v16, vcc")
    a.I("v_lshlrev_b32 v16, 1, v11")
    a.I("v_add_u32 v16, %d, v16" % ((1 - 34) & 0xffffffff))
    a.I("v_cmp_le_u32 vcc, 17, v11")
    a.I("v_cndmask_b32 v17, v17, v16, vcc")
    a.I("v_lshl_add_u32 v17, v10, 5, v17")
    a.I("v_lshlrev_b32 v17, 2, v17")
    a.I("v_add_u32 v17, s7, v17")
    a.I("s_waitcnt lgkmcnt(0)")
    a.I("s_lshr_b32 s8, s3, 1")
    a.I("s_lshl_b32 s8, s8, 4")
    a.I("s_lshr_b32 s6, s6, s8")
    a.I("s_lshl_b32 s6, s6, 16")
    a.I("v_mov_b32 v18, 0x%x" % LOG2E)
    a.I("v_mul_f32 v19, s6, v18")
    a.I("v_exp_f32 v19, v19")
    a.I("v_cvt_pk_bf16_f32 v19, v19, v19")
    a.I("v_lshlrev_b32 v19, 16, v19")
    a.I("s_waitcnt vmcnt(0)")
    a.stamp()
    for r in (4, 5, 6, 7): a.I("v_lshlrev_b32 v%d, 16, v%d" % (r, r))
    a.I("v_mul_f32 v4, v4, v18")
    a.I("v_exp_f32 v4, v4")
    a.I("v_cvt_pk_bf16_f32 v4, v4, v4")
    a.I("v_lshlrev_b32 v4, 16, v4")
    a.I("v_mul_f32 v4, v4, v19")
    a.I("v_mul_f32 v4, v4, v18")
    a.I("v_mul_f32 v5, v5, v19")
    a.I("v_mul_f32 v5, 0.15915494, v5")
    a.I("v_max_f32 v20, abs(v6), abs(v7)")
    for sh in ("row_shr:1", "row_shr:2", "row_shr:4", "row_shr:8"):
        a.I("v_max_f32_dpp v20, v20, v20 %s row_mask:0xf bank_mask:0xf bound_ctrl:0" % sh)
    a.I("v_max_f32_dpp v20, v20, v20 row_bcast:15 row_mask:0xa bank_mask:0xf")
    a.I("v_max_f32_dpp v20, v20, v20 row_bcast:31 row_mask:0xc bank_mask:0xf")
    a.I("v_frexp_exp_i32_f32 v20, v20")
    a.I("v_readlane_b32 s9, v20, 63")
    a.I("s_sub_i32 s10, 0, s9")
    a.I("v_ldexp_f32 v22, v6, s10")
    a.I("v_ldexp_f32 v23, v7, s10")
    a.I("s_add_i32 s9, s9, 1")
    a.I("v_ldexp_f32 v21, v19, s9")
    def direct(d, p):
        a.I("v_mul_f32 v24, %s, v4" % p[0])
        a.I("v_mul_f32 v25, %s, v5" % p[1])
        a.I("v_exp_f32 v24, v24")
        a.I("v_fract_f32 v25, v25")
        a.I("v_cos_f32 v26, v25")
        a.I("v_sin_f32 v27, v25")
        a.I("v_mul_f32 v%d, v24, v26" % d)
        a.I("v_mul_f32 v%d, v24, v27" % (d + 1))
    import struct
    f = lambda x: "0x%08x" % struct.unpack("<I", struct.pack("<f", x))[0]
    Z = {}
    nxt = [30]
    def alloc():
        r = nxt[0]; nxt[0] += 2; return r
    for p in (1, 8, 64, 256):
        Z[p] = alloc(); direct(Z[p], (f(-float(p)), f(float(p))))
    def wrA(row, r):
        a.I("v_cvt_pk_f16_f32 v28, v%d, v%d" % (r, r + 1))
        a.I("ds_write_b32 v8, v28 offset:%d" % (row * ROW))
    def wrB(row, r):
        a.I("v_cvt_pk_f16_f32 v29, v%d, -v%d" % (r, r + 1))
        a.I("ds_write_b32 v8, v29 offset:%d" % ((32 + row) * ROW))
    a.I("v_mov_b32 v28, 0x3c00")
    a.I("ds_write_b32 v8, v28")
    for i in range(2, 8):
        Z[8 * i] = alloc(); cmul(a, Z[8 * i], Z[8 * (i - 1)], Z[8])
        Z[i] = alloc(); cmul(a, Z[i], Z[i - 1], Z[1])
    Z[128] = alloc(); cmul(a, Z[128], Z[64], Z[64])
    Z[192] = alloc(); cmul(a, Z[192], Z[128], Z[64])
    for i in range(1, 8): wrA(i, Z[8 * i])
    for m in (1, 2, 3): wrA(8 * m, Z[64 * m])
    t0 = alloc(); t1 = alloc()
    for m in (1, 2, 3):
        for i in range(1, 8):
            t = t0 if (i & 1) else t1
            cmul(a, t, Z[64 * m], Z[8 * i]); wrA(8 * m + i, t)
    Cm = {0: 22}
    wrB(0, 22)
    for m in range(1, 9):
        Cm[m] = alloc(); cmul(a, Cm[m], Cm[m - 1], Z[256]); wrB(m, Cm[m])
    k = 0
    for row, (m, p) in enumerate([(0, 4), (1, 4), (2, 4), (3, 4), (0, 2), (1, 2), (0, 6), (1, 6), (0, 1), (0, 3), (0, 5), (0, 7)]):
        t = t0 if (row & 1) else t1
        cmul(a, t, Cm[m], Z[p]); wrB(9 + row, t)
    a.I("s_waitcnt lgkmcnt(0)")
    a.stamp()
    for st in range(8):
        a.I("ds_read_b128 v[%d:%d], v13 offset:%d" % (32 + 4 * st, 35 + 4 * st, st * 32))
        a.I("ds_read_b128 v[%d:%d], v14 offset:%d" % (64 + 4 * st, 67 + 4 * st, 32 * ROW + st * 32))
    for st in range(8):
        a.I("s_waitcnt lgkmcnt(%d)" % (14 - 2 * st))
        a.I("v_mfma_f32_32x32x16_f16 v[96:111], v[%d:%d], v[%d:%d], %s" % (32 + 4 * st, 35 + 4 * st, 64 + 4 * st, 67 + 4 * st, "0" if st == 0 else "v[96:111]"))
    for r in range(16):
        a.I("v_mul_f32 v%d, v%d, v21" % (96 + r, 96 + r))
        a.I("ds_write_b32 v17, v%d offset:%d" % (96 + r, 4 * (64 * (r >> 2) + 8 * (r & 3))))
    a.I("s_waitcnt lgkmcnt(0)")
    a.I("s_barrier")
    a.stamp()
    a.I("s_lshr_b32 s8, s3, 1")
    a.I("s_mul_i32 s11, s8, %d" % (2 * WB))
    a.I("s_lshl_b32 s12, s2, 1")
    a.I("s_add_u32 s12, s12, s8")
    a.I("s_mul_i32 s12, s12, %d" % KC_CH)
    ws_base(a, 44, KC, 12)
    a.I("v_and_b32 v3, 127, v0")
    a.I("v_lshlrev_b32 v4, 2, v3")
    a.I("v_add_u32 v31, %d, v4" % KC_COPY)
    a.I("v_lshlrev_b32 v3, 1, v3")
    a.I("v_sub_u32 v3, 2048, v3")
    for m in range(9):
        b = 32 + 8 * (m % 2) * 2
        for e in range(3):
            a.I("v_add_u32 v%d, %d, v3" % (b + e, (-256 * m - e) & 0xffffffff))
        if m == 8:
            for e in range(3):
                a.I("v_max_i32 v%d, 0, v%d" % (b + 8 + e, b + e))
                a.I("v_cvt_f32_u32 v%d, v%d" % (b + 3 + e, b + 8 + e))
        else:
            if m == 7:
                a.I("v_max_i32 v%d, 0, v%d" % (b + 2, b + 2))
            for e in range(3):
                a.I("v_cvt_f32_u32 v%d, v%d" % (b + 3 + e, b + e))
        if m < 7:
            a.I("v_cvt_pk_bf16_f32 v%d, v%d, v%d" % (b + 3, b + 3, b + 4))
            a.I("v_cvt_pk_bf16_f32 v%d, v%d, v%d" % (b + 5, b + 5, b + 5))
            a.I("v_and_b32 v%d, 0xffff0000, v%d" % (b + 4, b + 3))
            a.I("v_lshlrev_b32 v%d, 16, v%d" % (b + 3, b + 3))
            a.I("v_lshlrev_b32 v%d, 16, v%d" % (b + 5, b + 5))
        for e in range(3):
            a.I("v_cvt_u32_f32 v%d, v%d" % (b + 3 + e, b + 3 + e))
            a.I("v_lshl_add_u32 v%d, v%d, 2, s11" % (b + 3 + e, b + 3 + e))
        for e in range(3):
            a.I("ds_read_b32 v%d, v%d" % (b + 8 + e, b + 3 + e))
            a.I("ds_read_b32 v%d, v%d offset:%d" % (b + 11 + e, b + 3 + e, WB))
        a.I("s_waitcnt lgkmcnt(0)")
        for e in range(3):
            a.I("v_add_f32 v%d, v%d, v%d" % (b + 8 + e, b + 8 + e, b + 11 + e))
        if m == 8:
            for e in range(3):
                a.I("v_cmp_le_i32 vcc, 0, v%d" % (b + e))
                a.I("v_cndmask_b32 v%d, 0, v%d, vcc" % (b + 8 + e, b + 8 + e))
        a.I("v_cvt_pk_bf16_f32 v%d, v%d, v%d" % (b + 14, b + 8, b + 9))
        a.I("v_cvt_pk_bf16_f32 v%d, v%d, v%d" % (b + 15, b + 9, b + 10))
        off = 512 * m
        if off < 4096:
            a.I("global_store_dword v4, v%d, s[44:45] offset:%d" % (b + 14, off))
            a.I("global_store_dword v31, v%d, s[44:45] offset:%d" % (b + 15, off))
        else:
            a.I("v_add_u32 v4, 4096, v4")
            a.I("v_add_u32 v31, 4096, v31")
            a.I("global_store_dword v4, v%d, s[44:45]" % (b + 14))
            a.I("global_store_dword v31, v%d, s[44:45]" % (b + 15))
    a.stamp()
    a.stamp_flush(kidx)
    a.I("s_endpgm")
    a.L("P0_tr")
    a.C("transpose + stats role: 32 rows per WG, wave handles 8 rows")
    RS = 1024 + 32
    a.I("s_sub_u32 s4, s2, %d" % NK)
    a.I("s_lshl_b32 s5, s4, 2")
    a.I("s_add_u32 s5, s5, s3")
    a.I("s_lshl_b32 s6, s5, 13")
    a.I("v_lshl_add_u32 v3, v2, 4, s6")
    a.I("v_add_u32 v4, 4096, v3")
    a.I("s_waitcnt lgkmcnt(0)")
    a.stamp(1)
    for r in range(8):
        a.I("global_load_dwordx4 v[%d:%d], v%d, %s offset:%d" % (32 + 4 * r, 35 + 4 * r, 3 if r < 4 else 4, sp(P_U), (r & 3) * 1024))
    a.I("s_mul_i32 s7, s3, %d" % (8 * RS))
    a.I("v_lshl_add_u32 v5, v2, 4, s7")
    a.I("s_mov_b32 s8, 0x3f803f80")
    for r in range(16): a.I("v_mov_b32 v%d, 0" % (8 + r))
    ws_base(a, 44, ST2)
    a.I("s_lshl_b32 s9, s4, 8")
    a.I("v_lshl_add_u32 v6, v2, 2, s9")
    a.I("s_cmp_lg_u32 s3, 0")
    a.I("s_cbranch_scc1 P0_tr_nz")
    a.I("global_store_dword v6, v8, s[44:45]")
    a.I("s_waitcnt vmcnt(0)")
    a.L("P0_tr_nz")
    a.I("s_waitcnt vmcnt(0)")
    a.stamp()
    for r in range(8):
        a.I("ds_write_b128 v5, v[%d:%d] offset:%d" % (32 + 4 * r, 35 + 4 * r, r * RS))
    for q in range(4):
        for r in range(8):
            a.I("v_dot2c_f32_bf16 v%d, s8, v%d" % (8 + 2 * r, 32 + 4 * r + q))
        for r in range(8):
            a.I("v_dot2c_f32_bf16 v%d, v%d, v%d" % (9 + 2 * r, 32 + 4 * r + q, 32 + 4 * r + q))
    for sh in ("row_shr:1", "row_shr:2", "row_shr:4", "row_shr:8"):
        for r in range(16):
            a.I("v_add_f32_dpp v%d, v%d, v%d %s row_mask:0xf bank_mask:0xf bound_ctrl:0" % (8 + r, 8 + r, 8 + r, sh))
    for sh in ("row_bcast:15 row_mask:0xa", "row_bcast:31 row_mask:0xc"):
        for r in range(16):
            a.I("v_add_f32_dpp v%d, v%d, v%d %s bank_mask:0xf" % (8 + r, 8 + r, 8 + r, sh))
    ws_base(a, 46, ST0)
    a.I("s_lshl_b32 s9, s5, 6")
    a.I("v_mov_b32 v6, s9")
    a.I("s_mov_b32 exec_lo, 0")
    a.I("s_mov_b32 exec_hi, 0x80000000")
    for q in range(4):
        a.I("global_store_dwordx4 v6, v[%d:%d], s[46:47] offset:%d" % (8 + 4 * q, 11 + 4 * q, 16 * q))
    a.I("s_mov_b64 exec, -1")
    a.I("s_waitcnt lgkmcnt(0)")
    a.I("s_barrier")
    a.I("v_lshrrev_b32 v3, 4, v2")
    a.I("v_bfe_u32 v4, v2, 2, 2")
    a.I("v_lshl_add_u32 v4, v3, 3, v4")
    a.I("v_mov_b32 v5, %d" % RS)
    a.I("v_mul_u32_u24 v4, v4, v5")
    a.I("v_and_b32 v5, 3, v2")
    a.I("v_lshl_add_u32 v4, v5, 3, v4")
    a.I("s_lshl_b32 s7, s3, 8")
    a.I("v_add_u32 v4, s7, v4")
    for t in range(8):
        a.I("ds_read_b64_tr_b16 v[%d:%d], v4 offset:%d" % (32 + 4 * t, 33 + 4 * t, 32 * t))
        a.I("ds_read_b64_tr_b16 v[%d:%d], v4 offset:%d" % (34 + 4 * t, 35 + 4 * t, 32 * t + 4 * RS))
    a.I("v_and_b32 v5, 15, v2")
    a.I("v_lshlrev_b32 v5, 12, v5")
    a.I("v_lshl_add_u32 v5, v3, 4, v5")
    a.I("s_lshl_b32 s7, s3, 19")
    a.I("s_lshl_b32 s9, s4, 6")
    a.I("s_add_u32 s7, s7, s9")
    a.I("v_add_u32 v5, s7, v5")
    ws_base(a, 44, XT0)
    for t in range(8):
        a.I("s_waitcnt lgkmcnt(%d)" % (14 - 2 * t))
        a.I("global_store_dwordx4 v5, v[%d:%d], s[44:45]" % (32 + 4 * t, 35 + 4 * t))
        if t < 7: a.I("v_add_u32 v5, 0x10000, v5")
    a.stamp()
    a.stamp_flush(kidx)
    a.I("s_endpgm")
    def wprep(label, ptr, rowbytes, nks, colsum, fstride):
        a.I("s_mul_i32 s7, s3, %d" % (nks * 32 * 32))
        a.I("v_lshrrev_b32 v3, 1, v2")
        a.I("v_and_b32 v4, 1, v2")
        a.I("s_mul_i32 s8, s5, %d" % rowbytes)
        a.I("s_lshl_b32 s9, s4, 5")
        a.I("s_add_u32 s8, s8, s9")
        a.I("v_mov_b32 v5, %d" % rowbytes)
        a.I("v_mul_u32_u24 v5, v3, v5")
        a.I("v_lshl_add_u32 v5, v4, 4, v5")
        a.I("v_add_u32 v5, s8, v5")
        a.I("v_lshl_add_u32 v6, v2, 4, s7")
        a.I("s_waitcnt lgkmcnt(0)")
        a.stamp(1)
        for ks in range(nks):
            a.I("global_load_dwordx4 v[%d:%d], v5, %s" % (32 + 4 * ks, 35 + 4 * ks, sp(ptr)))
            if ks < nks - 1: a.I("v_add_u32 v5, %d, v5" % (32 * rowbytes))
        if colsum:
            a.I("v_lshl_add_u32 v9, s4, 4, v2")
            a.I("v_lshlrev_b32 v10, 1, v9")
            a.I("v_min_u32 v10, %d, v10" % (2 * F - 2))
            a.I("global_load_ushort v11, v10, %s" % sp(P_B1))
        a.I("v_lshrrev_b32 v7, 2, v2")
        a.I("v_and_b32 v8, 3, v2")
        a.I("v_lshlrev_b32 v7, 5, v7")
        a.I("v_lshl_add_u32 v7, v8, 3, v7")
        a.I("v_add_u32 v7, s7, v7")
        extra = 1 if colsum else 0
        for ks in range(nks):
            a.I("s_waitcnt vmcnt(%d)" % (nks - 1 - ks + extra))
            a.I("ds_write_b128 v6, v[%d:%d] offset:%d" % (32 + 4 * ks, 35 + 4 * ks, 1024 * ks))
        a.I("s_waitcnt lgkmcnt(0)")
        a.stamp()
        for ks in range(nks):
            a.I("ds_read_b64_tr_b16 v[%d:%d], v7 offset:%d" % (32 + 4 * ks, 33 + 4 * ks, 1024 * ks))
            a.I("ds_read_b64_tr_b16 v[%d:%d], v7 offset:%d" % (34 + 4 * ks, 35 + 4 * ks, 1024 * ks + 512))
            if ks % 4 == 3: a.I("s_waitcnt lgkmcnt(4)")
        a.I("v_lshl_add_u32 v5, v2, 4, s6")
        a.I("s_waitcnt lgkmcnt(0)")
        for ks in range(nks):
            if ks: a.I("v_add_u32 v5, %d, v5" % fstride)
            a.I("global_store_dwordx4 v5, v[%d:%d], %s" % (32 + 4 * ks, 35 + 4 * ks, sp(P_WS)))
        if colsum:
            a.I("s_mov_b32 s8, 0x3f803f80")
            for q in range(4): a.I("v_mov_b32 v%d, 0" % (12 + q))
            for ks in range(nks):
                for q in range(4):
                    a.I("v_dot2c_f32_bf16 v%d, s8, v%d" % (12 + q, 32 + 4 * ks + q))
            a.I("v_add_f32 v12, v12, v13")
            a.I("v_add_f32 v14, v14, v15")
            a.I("v_add_f32 v12, v12, v14")
            a.I("v_mov_b32 v13, v12")
            a.I("v_permlane32_swap_b32 v12, v13")
            a.I("v_add_f32 v12, v12, v13")
            a.I("v_mov_b32 v13, v12")
            a.I("v_permlane16_swap_b32 v12, v13")
            a.I("v_add_f32 v12, v12, v13")
            a.I("v_lshlrev_b32 v9, 2, v9")
            a.I("s_waitcnt vmcnt(%d)" % nks)
            a.I("v_lshlrev_b32 v11, 16, v11")
            ws_base(a, 44, CS1)
            a.I("s_mov_b64 exec, 0xffff")
            a.I("global_store_dword v9, v12, s[44:45]")
            a.I("v_add_u32 v9, %d, v9" % (B1F - CS1))
            a.I("global_store_dword v9, v11, s[44:45]")
        a.stamp()
        a.stamp_flush(kidx)
        a.I("s_endpgm")
    a.L("P0_w1")
    a.I("s_sub_u32 s4, s2, %d" % (NK + NT))
    a.I("s_lshl_b32 s4, s4, 2")
    a.I("s_add_u32 s4, s4, s3")
    a.I("s_mov_b32 s5, 0")
    a.I("s_mul_i32 s10, s4, 9363")
    a.I("s_lshr_b32 s10, s10, 16")
    a.I("s_mul_i32 s11, s10, 105")
    a.I("s_add_u32 s6, s11, s4")
    a.I("s_lshl_b32 s6, s6, 10")
    a.I("s_add_u32 s6, s6, 0x%x" % W1F)
    wprep("w1", P_W1, 2 * F, 16, True, 7168)
    a.L("P0_w2")
    a.I("s_sub_u32 s10, s2, %d" % (NK + NT + NW1))
    a.I("s_and_b32 s4, s10, 7")
    a.I("s_lshl_b32 s4, s4, 2")
    a.I("s_add_u32 s4, s4, s3")
    a.I("s_lshr_b32 s10, s10, 3")
    a.I("s_mul_i32 s5, s10, 448")
    a.I("s_mul_i32 s6, s4, 56")
    a.I("s_mul_i32 s10, s10, 14")
    a.I("s_add_u32 s6, s6, s10")
    a.I("s_lshl_b32 s6, s6, 10")
    a.I("s_add_u32 s6, s6, 0x%x" % W2F)
    wprep("w2", P_W2, 2 * D, 14, False, 1024)
    a.L("P0_end")
    a.I("s_endpgm")
    return a
```

```python
import sys
from asmlib import *
from layout import *
import k_p0, k_conv, k_g1, k_g2
NAME = "interleave_layers__ssm_conv_s4d__dense_activation_mish__prompt"
def build(path, extra_nops=0, stamps=False):
    STAMPS[0] = stamps
    ref = open("cdna_kernels/%s.s.ref" % NAME).read()
    hdr = [l for l in ref.split("\n") if l.startswith(";") and "@launch" not in l and "Override" not in l and "grid=ceil" not in l]
    ks = [
        ("p0_kernel", k_p0.gen_p0(0), k_p0.P0_GRID, k_p0.P0_LDS),
        ("conv1_kernel", k_conv.gen_conv("c1", XT0, ST0, XT1, 1), k_conv.CONV_GRID, k_conv.CONV_LDS),
        ("g1a_kernel", k_g1.gen_g1("g1a", XT1, ACT1, 2), k_g1.G1_GRID, k_g1.G1_LDS),
        ("g2a_kernel", k_g2.gen_g2("g2a", ACT1, XT1, XT2, ST2, False, 3), k_g2.G2_GRID, k_g2.G2_LDS),
        ("conv2_kernel", k_conv.gen_conv("c2", XT2, ST2, XT3, 4), k_conv.CONV_GRID, k_conv.CONV_LDS),
        ("g1b_kernel", k_g1.gen_g1("g1b", XT3, ACT2, 5), k_g1.G1_GRID, k_g1.G1_LDS),
        ("g2b_kernel", k_g2.gen_g2("g2b", ACT2, XT3, None, None, True, 6), k_g2.G2_GRID, k_g2.G2_LDS),
    ]
    if extra_nops:
        n = Asm(); n.I("s_endpgm")
        ks.append(("nop_kernel", n, 256, 0))
    out = list(hdr)
    for (n, a, g, lds) in ks:
        for rep in range(extra_nops if n == "nop_kernel" else 1):
            out.append("; @launch kernel=%s grid=(%d,1,1) block=(256,1,1) lds=%d" % (n, g, lds))
    out.append('.amdgcn_target "amdgcn-amd-amdhsa--gfx950"')
    out.append(".text")
    descs = []
    for (n, a, g, lds) in ks:
        b, d, info = kernel_text(n, a)
        print(n, info)
        out.append(b); descs.append(d)
    out.append('.section .rodata,"a"')
    out += descs
    open(path, "w").write("\n".join(out))
if __name__ == "__main__":
    build(sys.argv[1] if len(sys.argv) > 1 else "cdna_kernels/%s.s" % NAME, int(sys.argv[2]) if len(sys.argv) > 2 else 0, len(sys.argv) > 3)
```

```python
L = 2048; D = 512; F = 1792; N = 128
XTB = 32768 + 256
X2T = 16384 + 256
ATS = 57344
X1 = 0x0000000
X3 = 0x0280000
X2 = 0x0500000
ACT1 = 0x0800000
ACT2 = 0x1000000
W2F = 0x1800000
ST0 = 0x1A00000
ST2 = 0x1A10000
PS2 = 0x1A20000
CSV = 0x1A80000
PS1A = 0x1C00000
PS1B = 0x1D00000
WS_END = 0x1E00000
P_U, P_LAR, P_AI, P_CR, P_CI, P_LDT, P_DSK, P_BX, P_W1, P_B1, P_W2, P_OUT, P_DBG, P_WS = [16 + 2 * i for i in range(14)]
def sp(i): return "s[%d:%d]" % (i, i + 1)
LOG2E = 0x3fb8aa3b
LDS_TOTAL = 163840
SB = 114688
KF = 86016
PREP = 95232
STS = 103424
TROW = 528
TCH = 53 * TROW
TBL = LDS_TOTAL - 2 * TCH
UB = SB
USTR = 4608
KCOP = SB + 9216
KCS = 4160
STT = SB + 25856
YB = SB + 9216
CSP = SB + 43008
```

```python
import sys, struct, re
from asmlib import *
from mlayout import *
NAME = "interleave_layers__ssm_conv_s4d__dense_activation_mish__prompt"
f32 = lambda x: "0x%08x" % struct.unpack("<I", struct.pack("<f", x))[0]
WS = "s[44:47]"
SOFF = 52
S_C, S_TM1, S_TN1, S_TM2, S_TN2, S_BUD = 4, 5, 6, 7, 8, 9
S_DSK = 66
KSAVE = 224

class M(Asm):
    def __init__(self, stampre=None):
        Asm.__init__(self)
        self.vq = []; self.lq = []
        self.tail = []
        self.stampre = stampre
        self.snames = []
    def stamp(self, name):
        if self.stampre is None or not re.search(self.stampre, name): return
        i = len(self.snames)
        assert i < 15, "too many stamps"
        self.snames.append(name)
        self.I("s_memrealtime s[%d:%d]" % (70 + 2 * i, 71 + 2 * i))
    def flush(self):
        if self.stampre is None: return
        self.I("s_waitcnt vmcnt(0)")
        n = len(self.snames)
        self.I("s_memrealtime s[%d:%d]" % (70 + 2 * n, 71 + 2 * n))
        self.snames.append("end")
        self.I("s_lshl_b32 s68, s2, 2")
        self.I("s_add_u32 s68, s68, s3")
        self.I("s_lshl_b32 s68, s68, 8")
        self.I("s_add_u32 s68, s68, 4096")
        self.I("s_mov_b64 exec, 1")
        self.I("v_mov_b32 v2, s68")
        self.I("s_waitcnt lgkmcnt(0)")
        for i in range(n + 1):
            self.I("v_mov_b32 v0, s%d" % (70 + 2 * i))
            self.I("v_mov_b32 v1, s%d" % (71 + 2 * i))
            self.I("global_store_dwordx2 v2, v[0:1], s[40:41] offset:%d" % (8 * i))
            self.I("s_nop 1")
        self.I("v_mov_b32 v0, s9")
        self.I("v_mov_b32 v1, 0")
        self.I("global_store_dwordx2 v2, v[0:1], s[40:41] offset:248")
    def vm(self, text, tag="-"):
        self.I(text); self.vq.append(tag)
    def vwait(self, tag=None):
        if tag is None:
            self.I("s_waitcnt vmcnt(0)"); self.vq = []; return
        if tag not in self.vq: return
        idx = len(self.vq) - 1 - self.vq[::-1].index(tag)
        n = min(len(self.vq) - 1 - idx, 63)
        self.I("s_waitcnt vmcnt(%d)" % n)
        self.vq = self.vq[len(self.vq) - n:] if n else []
    def ds(self, text, tag="-"):
        self.I(text); self.lq.append(tag)
    def lwait(self, tag=None):
        if tag is None:
            self.I("s_waitcnt lgkmcnt(0)"); self.lq = []; return
        if tag not in self.lq: return
        idx = len(self.lq) - 1 - self.lq[::-1].index(tag)
        n = min(len(self.lq) - 1 - idx, 15)
        self.I("s_waitcnt lgkmcnt(%d)" % n)
        self.lq = self.lq[len(self.lq) - n:] if n else []
    def barrier(self):
        self.lwait(); self.I("s_barrier")
    def sched(self, main, fill, per=2, start=0):
        fill = list(fill)
        for n, m in enumerate(main):
            m() if callable(m) else self.I(m)
            if n >= start:
                for _ in range(per):
                    if fill:
                        x = fill.pop(0)
                        x() if callable(x) else self.I(x)
        for x in fill: x() if callable(x) else self.I(x)
    def retry(self, label, reissue, check, after=()):
        self.I("s_cbranch_vccnz R%s" % label)
        self.L("B%s" % label)
        t = ["R%s:" % label, "s_cmp_eq_u32 s%d, 0" % S_BUD, "s_cbranch_scc1 Q%s" % label,
             "s_sub_u32 s%d, s%d, 1" % (S_BUD, S_BUD)]
        t += list(reissue) + ["s_waitcnt vmcnt(0)"] + list(check) + ["s_cbranch_vccnz R%s" % label, "Q%s:" % label]
        t += list(after) + ["s_nop 4", "s_branch B%s" % label]
        self.tail.append(t)

def rr(r, n=4, k="v"): return "%s[%d:%d]" % (k, r, r + n - 1)

def bf_round_pair(a, x, y):
    a.I("v_cvt_pk_bf16_f32 v%d, v%d, v%d" % (x, x, y))
    a.I("v_and_b32 v%d, 0xffff0000, v%d" % (y, x))
    a.I("v_lshlrev_b32 v%d, 16, v%d" % (x, x))

def fin_stats(a, s_, q_, out, tmp):
    a.I("v_mul_f32 v%d, 0x3b000000, v%d" % (s_, s_))
    a.I("v_mul_f32 v%d, 0x3b000000, v%d" % (q_, q_))
    a.I("v_fma_f32 v%d, -v%d, v%d, v%d" % (q_, s_, s_, q_))
    a.I("v_max_f32 v%d, 0, v%d" % (q_, q_))
    a.I("v_cvt_pk_bf16_f32 v%d, v%d, v%d" % (tmp, q_, q_))
    a.I("v_lshlrev_b32 v%d, 16, v%d" % (tmp, tmp))
    a.I("v_add_f32 v%d, 0x3727c5ac, v%d" % (tmp, tmp))
    a.I("v_cvt_pk_bf16_f32 v%d, v%d, v%d" % (tmp, tmp, tmp))
    a.I("v_lshlrev_b32 v%d, 16, v%d" % (tmp, tmp))
    a.I("v_sqrt_f32 v%d, v%d" % (tmp, tmp))
    a.I("v_cvt_pk_bf16_f32 v%d, v%d, v%d" % (out, s_, tmp))

def cmul(d, x, y):
    return ["v_pk_mul_f32 v[%d:%d], v[%d:%d], v[%d:%d] op_sel:[0,0] op_sel_hi:[0,1]" % (d, d + 1, x, x + 1, y, y + 1),
            "v_pk_fma_f32 v[%d:%d], v[%d:%d], v[%d:%d], v[%d:%d] op_sel:[1,1,0] op_sel_hi:[1,0,1] neg_lo:[0,1,0]" % (d, d + 1, x, x + 1, y, y + 1, d, d + 1)]

def addr_xstore1(a, v, t1):
    a.I("v_lshrrev_b32 v%d, 2, v0" % t1)
    a.I("v_mul_u32_u24 v%d, 0x%x, v%d" % (v, XTB, t1))
    a.I("v_and_b32 v%d, 3, v0" % t1)
    a.I("v_lshl_add_u32 v%d, v%d, 4, v%d" % (v, t1, v))
    a.I("s_lshl_b32 s12, s%d, 7" % S_C)
    a.I("v_add_u32 v%d, s12, v%d" % (v, v))

def kcopy_addr(a, vw, vt, t1, t2):
    a.I("s_lshr_b32 s12, s3, 1")
    a.I("s_mul_i32 s12, s12, %d" % (2 * KCS))
    a.I("s_add_u32 s12, s12, %d" % KCOP)
    a.I("v_and_b32 v%d, 127, v0" % t1)
    a.I("v_lshl_add_u32 v%d, v%d, 4, s12" % (vw, t1))
    a.I("v_sub_u32 v%d, 127, v%d" % (t1, t1))
    a.I("v_and_b32 v%d, 1, v%d" % (t2, t1))
    a.I("v_lshl_add_u32 v%d, v%d, 4, s12" % (vt, t2))
    a.I("v_bfe_u32 v%d, v%d, 1, 1" % (t2, t1))
    a.I("v_mul_u32_u24 v%d, 0x%x, v%d" % (t2, KCS, t2))
    a.I("v_add3_u32 v%d, v%d, v%d, 64" % (vt, vt, t2))
    a.I("v_add_u32 v%d, 4032, v%d" % (vt, vt))

def kcopy_write(a, tag, Dr, Or, vw, vt, Z):
    for g in range(2):
        d = Dr + 8 * g; o = Or + 4 * g
        a.ds("ds_write_b128 v%d, %s offset:%d" % (vw, rr(d), 2048 * g))
        for i in range(4):
            a.I("v_alignbit_b32 v%d, v%d, v%d, 16" % (o + i, d + i + 1, d + i))
        a.ds("ds_write_b128 v%d, %s offset:%d" % (vw, rr(o), 2048 * g + KCS))
    for i in range(1, 4): a.I("v_mov_b32 v%d, 0" % (Z + i))
    a.I("v_mov_b32 v%d, 0" % Z)
    a.I("v_lshrrev_b32 v%d, 5, v2" % Or)
    a.I("v_mul_u32_u24 v%d, 0x%x, v%d" % (Or, USTR - 512, Or))
    a.I("v_lshl_add_u32 v%d, v2, 4, v%d" % (Or, Or))
    a.I("v_add_u32 v%d, 0x%x, v%d" % (Or, UB, Or))
    a.ds("ds_write_b128 v%d, %s" % (Or, rr(Z)))
    a.I("v_and_b32 v%d, 127, v0" % (Or + 1))
    a.I("v_and_b32 v%d, 0xffff, v%d" % (Or + 2, Dr + 12))
    a.I("v_cmp_eq_u32 vcc, 127, v%d" % (Or + 1))
    a.I("v_cndmask_b32 v%d, 0, v%d, vcc" % (Z, Or + 2))
    a.I("s_bitcmp0_b32 s3, 0")
    a.I("s_cbranch_scc1 KT%s" % tag)
    a.I("s_mov_b32 exec_lo, 0")
    a.I("s_mov_b32 exec_hi, 0xf0000000")
    a.I("ds_write_b128 v%d, %s" % (vt, rr(Z)))
    a.I("s_mov_b64 exec, -1")
    a.L("KT%s" % tag)

XC = 120
DMAV = 146
def w1_dma(a, blk):
    th = []
    def setup():
        a.I("s_add_u32 s12, s3, %d" % (4 * blk))
        a.I("s_mul_i32 s13, s12, 7168")
        a.I("s_add_u32 s12, s12, s%d" % S_TN1)
        a.I("s_and_b32 s12, s12, 15")
        a.I("s_mul_i32 s14, s12, %d" % (32 * 3584))
    for i in range(7):
        def f(i=i):
            if i == 0: setup(); a.I("s_mov_b32 m0, s13")
            if i == 4: a.I("s_add_u32 m0, s13, 4096")
            a.vm("buffer_load_dwordx4 v%d, s[48:51], s14 offen offset:%d lds" % (DMAV + i, 1024 * (i & 3)), "w1b%d" % blk)
        th.append(f)
    return th

def s0(a):
    a.stamp("s0.start")
    a.I("s_load_dwordx16 s[16:31], s[0:1], 0")
    a.I("s_load_dwordx8 s[32:39], s[0:1], 64")
    a.I("s_load_dwordx4 s[40:43], s[0:1], 96")
    a.I("v_lshrrev_b32 v1, 6, v0")
    a.I("v_and_b32 v2, 63, v0")
    a.I("v_readfirstlane_b32 s3, v1")
    a.I("s_cmp_ge_u32 s2, 256")
    a.I("s_cbranch_scc1 ALL_end")
    a.I("s_and_b32 s12, s2, 7")
    a.I("s_lshr_b32 s13, s2, 3")
    a.I("s_lshl_b32 s%d, s12, 5" % S_C)
    a.I("s_add_u32 s%d, s%d, s13" % (S_C, S_C))
    a.I("s_and_b32 s14, s13, 3")
    a.I("s_lshr_b32 s%d, s13, 2" % S_TN2)
    a.I("s_lshl_b32 s%d, s12, 2" % S_TM2)
    a.I("s_add_u32 s%d, s%d, s14" % (S_TM2, S_TM2))
    a.I("s_lshr_b32 s%d, s12, 1" % S_TM1)
    a.I("s_lshl_b32 s%d, s%d, 2" % (S_TM1, S_TM1))
    a.I("s_add_u32 s%d, s%d, s14" % (S_TM1, S_TM1))
    a.I("s_and_b32 s%d, s12, 1" % S_TN1)
    a.I("s_lshl_b32 s%d, s%d, 3" % (S_TN1, S_TN1))
    a.I("s_add_u32 s%d, s%d, s%d" % (S_TN1, S_TN1, S_TN2))
    a.I("s_mov_b32 s%d, 0x4000" % S_BUD)
    a.I("s_lshl_b32 s12, s%d, 9" % S_C)
    a.I("v_lshl_add_u32 v3, v0, 1, s12")
    a.I("v_xor_b32 v11, 128, v3")
    a.I("s_lshl_b32 s12, s2, 13")
    a.I("s_lshl_b32 s13, s3, 11")
    a.I("s_add_u32 s12, s12, s13")
    a.I("v_lshl_add_u32 v108, v2, 4, s12")
    a.I("s_sub_u32 s12, s2, 32")
    a.I("s_cmp_lt_u32 s2, 224")
    a.I("s_cselect_b32 s67, s2, s12")
    a.I("s_lshr_b32 s68, s67, 2")
    a.I("s_and_b32 s67, s67, 3")
    a.I("s_lshl_b32 s12, s68, 15")
    a.I("s_lshl_b32 s13, s67, 8")
    a.I("s_add_u32 s12, s12, s13")
    a.I("s_lshl_b32 s13, s3, 6")
    a.I("s_add_u32 s12, s12, s13")
    a.I("v_lshrrev_b32 v4, 2, v2")
    a.I("v_and_b32 v5, 3, v2")
    a.I("v_lshlrev_b32 v109, 10, v4")
    a.I("v_lshl_add_u32 v109, v5, 4, v109")
    a.I("v_add_u32 v109, s12, v109")
    a.I("v_add_u32 v110, 0x4000, v109")
    a.I("s_lshl_b32 s12, s%d, 2" % S_C)
    a.I("v_lshl_add_u32 v111, v0, 13, s12")
    a.I("v_add_u32 v107, 4096, v111")
    addr_xstore1(a, 157, 4)
    for r in range(4): a.I("v_mov_b32 v%d, -1" % (184 + r))
    a.I("v_mov_b32 v170, 0")
    a.I("s_lshl_b32 s15, s%d, 2" % S_C)
    a.I("s_waitcnt lgkmcnt(0)")
    a.stamp("s0.args")
    a.I("s_load_dword s69, %s, s15" % sp(P_LDT))
    a.I("s_load_dword s%d, %s, s15" % (S_DSK, sp(P_DSK)))
    a.vm("global_load_ushort v4, v3, %s" % sp(P_LAR), "par")
    a.vm("global_load_ushort v5, v3, %s" % sp(P_AI), "par")
    a.vm("global_load_ushort v6, v3, %s" % sp(P_CR), "par")
    a.vm("global_load_ushort v7, v3, %s" % sp(P_CI), "par")
    a.vm("global_load_ushort v9, v11, %s" % sp(P_CR), "par")
    a.vm("global_load_ushort v10, v11, %s" % sp(P_CI), "par")
    a.I("s_add_u32 s12, s2, s3")
    a.I("s_cmp_lg_u32 s12, 0")
    a.I("s_cbranch_scc1 S0_nn")
    a.I("s_memrealtime s[10:11]")
    a.I("s_waitcnt lgkmcnt(0)")
    a.I("s_or_b32 s10, s10, 1")
    a.I("v_mov_b32 v168, s10")
    a.I("v_mov_b32 v169, s11")
    a.I("s_mov_b64 exec, 1")
    a.I("global_store_dwordx2 v170, v[168:169], %s sc1" % sp(P_DBG))
    a.I("s_mov_b64 exec, -1")
    a.L("S0_nn")
    a.vm("global_load_dwordx4 v[96:99], v108, %s" % sp(P_U), "rows")
    a.vm("global_load_dwordx4 v[100:103], v108, %s offset:1024" % sp(P_U), "rows")
    a.vm("global_load_dwordx4 v[112:115], v109, %s" % sp(P_W2), "w2p")
    a.vm("global_load_dwordx4 v[116:119], v110, %s" % sp(P_W2), "w2p")
    a.I("s_mov_b32 s44, s%d" % P_WS)
    a.I("s_mov_b32 s45, s%d" % (P_WS + 1))
    a.I("s_mov_b32 s46, 0x%x" % WS_END)
    a.I("s_mov_b32 s47, 0x20000")
    a.I("s_mov_b32 s48, s%d" % P_W1)
    a.I("s_mov_b32 s49, s%d" % (P_W1 + 1))
    a.I("s_mov_b32 s50, 0x%x" % (2 * D * F))
    a.I("s_mov_b32 s51, 0x20000")
    a.I("s_mov_b32 s12, 0x%x" % X1)
    a.vm("buffer_store_dwordx4 v[184:187], v157, %s, s12 offen sc1" % WS, "pfA")
    a.vm("buffer_store_dwordx4 v[184:187], v157, %s, s12 offen offset:64 sc1" % WS, "pfA")
    for i in range(8):
        a.vm("global_load_dword v%d, v%d, %s offset:%d" % (XC + i, 111 if i < 4 else 107, sp(P_U), 1024 * (i & 3)), "xcol")
    a.I("s_mul_i32 s12, s%d, 224" % S_TN1)
    a.I("v_lshl_add_u32 v24, v2, 4, s12")
    a.I("v_add_u32 v25, 4096, v24")
    a.I("v_mov_b32 v26, 3360")
    for i in range(7):
        a.I("v_add_u32 v27, %d, v2" % (64 * i))
        a.I("v_mul_u32_u24 v27, 4682, v27")
        a.I("v_lshrrev_b32 v27, 16, v27")
        a.I("v_mad_u32_u24 v%d, v27, v26, v%d" % (DMAV + i, 24 if i < 4 else 25))
    for f in w1_dma(a, 0): f()
    a.stamp("s0.issued")
    a.I("s_lshl_b32 s12, s%d, 1" % S_TN2)
    a.I("s_cmp_ge_u32 s12, 14")
    a.I("s_cselect_b32 s13, 14, 0")
    a.I("s_sub_u32 s12, s12, s13")
    a.I("s_mul_i32 s13, s3, 14")
    for s in range(14):
        a.I("s_add_u32 s14, s12, s13")
        a.I("s_lshl_b32 s%d, s14, 10" % (SOFF + s))
        if s < 13:
            a.I("s_add_u32 s12, s12, 1")
            a.I("s_cmp_eq_u32 s12, 14")
            a.I("s_cselect_b32 s12, 0, s12")
    a.I("s_lshr_b32 s12, s3, 1")
    a.I("s_mul_i32 s13, s12, %d" % TCH)
    a.I("s_add_u32 s13, s13, %d" % TBL)
    a.I("v_and_b32 v17, 127, v0")
    a.I("v_lshl_add_u32 v8, v17, 2, s13")
    a.I("v_and_b32 v24, 15, v2")
    a.I("v_lshrrev_b32 v25, 4, v2")
    a.I("v_mul_u32_u24 v13, 0x%x, v24" % TROW)
    a.I("v_lshl_add_u32 v13, v25, 4, v13")
    a.I("v_add_u32 v13, s13, v13")
    a.I("s_and_b32 s14, s3, 1")
    a.I("s_mul_i32 s15, s14, %d" % (16 * TROW))
    a.I("v_add_u32 v12, s15, v13")
    a.I("v_min_u32 v26, 4, v24")
    a.I("v_mul_u32_u24 v14, 0x%x, v26" % TROW)
    a.I("v_lshl_add_u32 v14, v25, 4, v14")
    a.I("v_add_u32 v14, s13, v14")
    a.I("v_lshlrev_b32 v27, 8, v24")
    a.I("v_add_u32 v28, %d, v27" % ((4 - 9 * 256) & 0xffffffff))
    a.I("v_cmp_le_u32 vcc, 9, v24")
    a.I("v_cndmask_b32 v15, v27, v28, vcc")
    a.I("v_add_u32 v28, %d, v27" % ((2 - 13 * 256) & 0xffffffff))
    a.I("v_cmp_le_u32 vcc, 13, v24")
    a.I("v_cndmask_b32 v15, v15, v28, vcc")
    a.I("v_cmp_gt_u32 vcc, 15, v24")
    a.I("v_cndmask_b32 v15, 6, v15, vcc")
    a.I("v_lshlrev_b32 v16, 1, v26")
    a.I("v_add_u32 v16, -1, v16")
    a.I("v_mov_b32 v28, 262")
    a.I("v_cmp_eq_u32 vcc, 0, v24")
    a.I("v_cndmask_b32 v16, v16, v28, vcc")
    a.I("s_mul_i32 s13, s12, 4608")
    a.I("s_add_u32 s13, s13, %d" % KF)
    a.I("s_lshl_b32 s15, s14, 8")
    a.I("s_add_u32 s15, s15, s13")
    a.I("v_lshl_add_u32 v28, v25, 6, s15")
    a.I("v_lshl_add_u32 v15, v15, 1, v28")
    a.I("v_lshl_add_u32 v16, v16, 1, v28")
    a.I("v_lshlrev_b32 v17, 3, v17")
    a.I("v_sub_u32 v17, 2048, v17")
    a.I("v_cvt_f32_u32 v17, v17")
    EA = 128
    for n in range(18):
        g, e = divmod(n, 9)
        a.I("v_add_f32 v%d, %s, v17" % (EA + n, f32(-float(1024 * g + e))))
    for n in range(0, 18, 2): bf_round_pair(a, EA + n, EA + n + 1)
    for n in range(18):
        a.I("v_cvt_u32_f32 v%d, v%d" % (EA + n, EA + n))
        a.I("v_lshl_add_u32 v%d, v%d, 1, s13" % (EA + n, EA + n))
    kcopy_addr(a, 171, 172, 24, 25)
    a.I("s_lshl_b32 s12, s3, 11")
    a.I("s_add_u32 s12, s12, %d" % PREP)
    a.I("v_lshl_add_u32 v161, v2, 4, s12")
    a.I("s_mul_i32 s13, s68, 9363")
    a.I("s_lshr_b32 s13, s13, 16")
    a.I("s_mul_i32 s13, s13, 7")
    a.I("s_sub_u32 s13, s68, s13")
    a.I("s_cmp_eq_u32 s13, 3")
    a.I("s_cselect_b32 s13, 9, 8")
    a.I("s_cselect_b32 s14, 1, 4")
    a.I("s_lshl_b32 s14, s14, 8")
    a.I("v_lshrrev_b32 v24, 4, v2")
    a.I("v_lshlrev_b32 v24, s13, v24")
    a.I("v_bfe_u32 v25, v2, 2, 2")
    a.I("v_lshl_add_u32 v24, v25, 6, v24")
    a.I("v_and_b32 v25, 3, v2")
    a.I("v_lshl_add_u32 v24, v25, 3, v24")
    a.I("v_add_u32 v162, s12, v24")
    a.I("v_add_u32 v163, s14, v162")
    a.I("s_lshl_b32 s12, s67, 3")
    a.I("s_lshl_b32 s13, s3, 1")
    a.I("s_add_u32 s12, s12, s13")
    a.I("s_mul_i32 s12, s12, 56")
    a.I("s_add_u32 s12, s12, s68")
    a.I("s_lshl_b32 s12, s12, 10")
    a.I("s_add_u32 s12, s12, 0x%x" % W2F)
    a.I("v_lshl_add_u32 v166, v2, 4, s12")
    a.I("v_add_u32 v167, 0x%x, v166" % ATS)
    a.I("s_lshl_b32 s12, s%d, 3" % S_TM1)
    a.I("s_lshl_b32 s13, s3, 1")
    a.I("s_add_u32 s12, s12, s13")
    a.I("s_mul_i32 s12, s12, %d" % ATS)
    a.I("s_mul_i32 s13, s%d, 3584" % S_TN1)
    a.I("s_add_u32 s12, s12, s13")
    a.I("v_lshl_add_u32 v158, v2, 4, s12")
    a.I("v_add_u32 v159, 0x%x, v158" % (ATS - 3584 + 4096))
    a.I("v_lshrrev_b32 v24, 5, v2")
    a.I("v_mul_u32_u24 v24, 0x%x, v24" % (ATS - 3584))
    a.I("v_add_u32 v160, v24, v158")
    a.I("s_lshl_b32 s12, s%d, 2" % S_TM2)
    a.I("s_add_u32 s12, s12, s3")
    a.I("s_mul_i32 s12, s12, %d" % X2T)
    a.I("s_lshl_b32 s13, s%d, 11" % S_TN2)
    a.I("s_add_u32 s12, s12, s13")
    a.I("s_add_u32 s12, s12, 0x%x" % X2)
    a.I("v_lshl_add_u32 v164, v2, 4, s12")
    a.I("s_waitcnt lgkmcnt(0)")
    a.I("s_lshr_b32 s12, s3, 1")
    a.I("s_lshl_b32 s12, s12, 4")
    a.I("s_lshr_b32 s69, s69, s12")
    a.I("s_lshl_b32 s69, s69, 16")
    a.I("v_mov_b32 v18, 0x%x" % LOG2E)
    a.I("v_mul_f32 v19, s69, v18")
    a.I("v_exp_f32 v19, v19")
    a.I("v_cvt_pk_bf16_f32 v19, v19, v19")
    a.I("v_lshlrev_b32 v19, 16, v19")
    a.I("s_mov_b32 s15, 0x3f803f80")
    for r in range(4): a.I("v_mov_b32 v%d, 0" % (104 + r))
    a.stamp("s0.pre")
    a.vwait("w2p")
    a.stamp("s0.w2p")
    a.ds("ds_write_b128 v161, v[112:115]")
    a.ds("ds_write_b128 v161, v[116:119] offset:1024")
    for dt in range(2):
        a.ds("ds_read_b64_tr_b16 v[%d:%d], v162 offset:%d" % (112 + 4 * dt, 113 + 4 * dt, 32 * dt), "prep")
        a.ds("ds_read_b64_tr_b16 v[%d:%d], v163 offset:%d" % (114 + 4 * dt, 115 + 4 * dt, 32 * dt), "prep")
    for q in range(4):
        for r in range(2):
            a.I("v_dot2c_f32_bf16 v%d, s15, v%d" % (104 + 2 * r, 96 + 4 * r + q))
            a.I("v_dot2c_f32_bf16 v%d, v%d, v%d" % (105 + 2 * r, 96 + 4 * r + q, 96 + 4 * r + q))
    a.lwait("prep")
    a.vm("buffer_store_dwordx4 v[112:115], v166, %s, 0 offen sc1" % WS, "w2f")
    a.vm("buffer_store_dwordx4 v[116:119], v167, %s, 0 offen sc1" % WS, "w2f")
    a.vm("global_load_dwordx2 v[168:169], v170, %s sc1" % sp(P_DBG), "nonce")
    for sh in ("row_shr:1", "row_shr:2", "row_shr:4", "row_shr:8"):
        for r in range(4):
            a.I("v_add_f32_dpp v%d, v%d, v%d %s row_mask:0xf bank_mask:0xf bound_ctrl:0" % (104 + r, 104 + r, 104 + r, sh))
    for sh in ("row_bcast:15 row_mask:0xa", "row_bcast:31 row_mask:0xc"):
        for r in range(4):
            a.I("v_add_f32_dpp v%d, v%d, v%d %s bank_mask:0xf" % (104 + r, 104 + r, 104 + r, sh))
    fin_stats(a, 104, 105, 96, 98)
    fin_stats(a, 106, 107, 97, 99)
    a.I("s_lshl_b32 s12, s3, 3")
    a.I("s_add_u32 s12, s12, %d" % STS)
    a.I("v_mov_b32 v98, s12")
    a.I("s_mov_b32 exec_lo, 0")
    a.I("s_mov_b32 exec_hi, 0x80000000")
    a.ds("ds_write_b64 v98, v[96:97]")
    a.I("s_mov_b64 exec, -1")
    a.stamp("s0.stats")
    K = []
    for r in (4, 5, 6, 7, 9, 10): K.append("v_lshlrev_b32 v%d, 16, v%d" % (r, r))
    K += ["v_mul_f32 v4, v4, v18", "v_exp_f32 v4, v4", "v_cvt_pk_bf16_f32 v4, v4, v4", "v_lshlrev_b32 v4, 16, v4",
          "v_mul_f32 v4, v4, v19", "v_mul_f32 v4, v4, v18", "v_mul_f32 v5, v5, v19", "v_mul_f32 v5, 0.15915494, v5",
          "v_max_f32 v20, abs(v6), abs(v7)", "v_max3_f32 v20, abs(v9), abs(v10), v20"]
    for sh in ("row_shr:1", "row_shr:2", "row_shr:4", "row_shr:8"):
        K.append("v_max_f32_dpp v20, v20, v20 %s row_mask:0xf bank_mask:0xf bound_ctrl:0" % sh)
    K += ["v_max_f32_dpp v20, v20, v20 row_bcast:15 row_mask:0xa bank_mask:0xf",
          "v_max_f32_dpp v20, v20, v20 row_bcast:31 row_mask:0xc bank_mask:0xf",
          "v_frexp_exp_i32_f32 v20, v20", "v_readlane_b32 s67, v20, 63", "s_sub_i32 s68, 0, s67",
          "v_ldexp_f32 v22, v6, s68", "v_ldexp_f32 v23, v7, s68", "s_add_i32 s67, s67, 1", "v_ldexp_f32 v21, v19, s67"]
    Z = {}; nxt = [30]
    def alloc():
        r = nxt[0]; nxt[0] += 2; return r
    def direct(d, p):
        K.extend(["v_mul_f32 v24, %s, v4" % f32(-float(p)), "v_mul_f32 v25, %s, v5" % f32(float(p)), "v_exp_f32 v24, v24",
                  "v_fract_f32 v25, v25", "v_cos_f32 v26, v25", "v_sin_f32 v27, v25",
                  "v_mul_f32 v%d, v24, v26" % d, "v_mul_f32 v%d, v24, v27" % (d + 1)])
    for p in (1, 8, 64, 256):
        Z[p] = alloc(); direct(Z[p], p)
    def wrA(row, r):
        K.append("v_cvt_pk_f16_f32 v28, v%d, v%d" % (r, r + 1))
        K.append("ds_write_b32 v8, v28 offset:%d" % (row * TROW))
    def wrB(row, r):
        K.append("v_cvt_pk_f16_f32 v29, v%d, -v%d" % (r, r + 1))
        K.append("ds_write_b32 v8, v29 offset:%d" % ((32 + row) * TROW))
    K.append("v_mov_b32 v28, 0x3c00"); K.append("ds_write_b32 v8, v28")
    for i in range(2, 8):
        Z[8 * i] = alloc(); K += cmul(Z[8 * i], Z[8 * (i - 1)], Z[8])
        Z[i] = alloc(); K += cmul(Z[i], Z[i - 1], Z[1])
    Z[128] = alloc(); K += cmul(Z[128], Z[64], Z[64])
    Z[192] = alloc(); K += cmul(Z[192], Z[128], Z[64])
    for i in range(1, 8): wrA(i, Z[8 * i])
    for m in (1, 2, 3): wrA(8 * m, Z[64 * m])
    t0 = alloc(); t1 = alloc()
    for m in (1, 2, 3):
        for i in range(1, 8):
            t = t0 if (i & 1) else t1
            K += cmul(t, Z[64 * m], Z[8 * i]); wrA(8 * m + i, t)
    Cm = {0: 22}
    wrB(0, 22)
    for m in range(1, 9):
        Cm[m] = alloc(); K += cmul(Cm[m], Cm[m - 1], Z[256]); wrB(m, Cm[m])
    for row, (m, p) in enumerate([(0, 4), (1, 4), (2, 4), (3, 4), (0, 2), (1, 2), (0, 6), (1, 6), (0, 1), (0, 3), (0, 5), (0, 7)]):
        t = t0 if (row & 1) else t1
        K += cmul(t, Cm[m], Z[p]); wrB(9 + row, t)
    assert nxt[0] <= 96
    fl = w1_dma(a, 1) + w1_dma(a, 2)
    def pf(v, base, off):
        def f():
            a.I("s_mov_b32 s15, 0x%x" % base)
            a.vm("buffer_store_dwordx4 v[184:187], v%d, %s, s15 offen offset:%d sc1" % (v, WS, off), "pfB")
        return f
    for base in (ACT1, ACT2):
        for i in range(3): fl.append(pf(158, base, 1024 * i))
        fl.append(pf(160, base, 3072))
        for i in range(3): fl.append(pf(159, base, 1024 * i))
    fl += [pf(164, 0, 0), pf(164, 0, 1024), pf(157, X3, 0), pf(157, X3, 64)]
    step = len(K) // (len(fl) + 1)
    for n, k in enumerate(K):
        a.I(k)
        if n % step == step - 1 and fl: fl.pop(0)()
    for f in fl: f()
    a.stamp("s0.pow")
    a.vwait("nonce")
    a.L("S0_np")
    a.I("v_readfirstlane_b32 s10, v168")
    a.I("v_readfirstlane_b32 s11, v169")
    a.I("s_cmp_lg_u32 s10, 0")
    a.I("s_cbranch_scc1 S0_nok")
    a.I("s_cmp_eq_u32 s%d, 0" % S_BUD)
    a.I("s_cbranch_scc1 S0_nok")
    a.I("s_sub_u32 s%d, s%d, 1" % (S_BUD, S_BUD))
    a.I("global_load_dwordx2 v[168:169], v170, %s sc1" % sp(P_DBG))
    a.I("s_waitcnt vmcnt(0)")
    a.I("s_branch S0_np")
    a.L("S0_nok")
    a.barrier()
    a.stamp("s0.b1")
    for st in range(8):
        a.ds("ds_read_b128 %s, v12 offset:%d" % (rr(32 + 4 * st), 64 * st), "k%d" % st)
        a.ds("ds_read_b128 %s, v13 offset:%d" % (rr(64 + 4 * st), 32 * TROW + 64 * st), "k%d" % st)
    a.I("s_cmp_lg_u32 s3, 0")
    a.I("s_cbranch_scc1 S0_pub")
    a.I("v_lshlrev_b32 v24, 3, v2")
    a.I("v_add_u32 v24, %d, v24" % STS)
    a.I("ds_read_b64 v[96:97], v24")
    a.I("s_lshl_b32 s12, s2, 6")
    a.I("s_add_u32 s12, s12, 0x%x" % ST0)
    a.I("v_lshlrev_b32 v24, 4, v2")
    a.I("v_mov_b32 v98, s10")
    a.I("v_mov_b32 v99, s11")
    a.I("s_mov_b64 exec, 15")
    a.I("s_waitcnt lgkmcnt(0)")
    a.I("buffer_store_dwordx4 v[96:99], v24, %s, s12 offen sc1" % WS)
    a.I("s_mov_b64 exec, -1")
    a.I("s_nop 4")
    a.L("S0_pub")
    for st in range(8):
        a.lwait("k%d" % st)
        a.I("v_mfma_f32_16x16x32_f16 v[4:7], %s, %s, %s" % (rr(32 + 4 * st), rr(64 + 4 * st), "0" if st == 0 else "v[4:7]"))
        a.ds("ds_read_b128 %s, v14 offset:%d" % (rr(96 + 4 * st if st < 6 else 174 + 4 * (st - 6)), 48 * TROW + 64 * st), "l%d" % st)
    for st in range(8):
        a.lwait("l%d" % st)
        b = 96 + 4 * st if st < 6 else 174 + 4 * (st - 6)
        a.I("v_mfma_f32_16x16x32_f16 v[24:27], %s, %s, %s" % (rr(32 + 4 * st), rr(b), "0" if st == 0 else "v[24:27]"))
    for (acc, ad) in ((4, 15), (24, 16)):
        for r in range(4): a.I("v_mul_f32 v%d, v%d, v21" % (acc + r, acc + r))
        a.I("v_cvt_pk_bf16_f32 v%d, v%d, v%d" % (acc, acc, acc + 1))
        a.I("v_cvt_pk_bf16_f32 v%d, v%d, v%d" % (acc + 2, acc + 2, acc + 3))
        a.ds("ds_write_b16 v%d, v%d" % (ad, acc))
        a.ds("ds_write_b16_d16_hi v%d, v%d offset:16" % (ad, acc))
        a.ds("ds_write_b16 v%d, v%d offset:32" % (ad, acc + 2))
        a.ds("ds_write_b16_d16_hi v%d, v%d offset:48" % (ad, acc + 2))
    a.barrier()
    a.stamp("s0.b2")
    DR = 32
    for n in range(18):
        g, e = divmod(n, 9)
        a.ds("ds_read_u16 v%d, v%d" % ((64 if e & 1 else DR) + 8 * g + (e >> 1), EA + n), "e%d" % g)
    for g in range(2):
        a.lwait("e%d" % g)
        for i in range(4): a.I("v_lshl_or_b32 v%d, v%d, 16, v%d" % (DR + 8 * g + i, 64 + 8 * g + i, DR + 8 * g + i))
    kcopy_write(a, "1", DR, 48, 171, 172, 56)
    for g in range(2):
        for i in range(5): a.I("v_accvgpr_write_b32 a%d, v%d" % (KSAVE + 5 * g + i, DR + 8 * g + i))
    a.barrier()
    a.stamp("s0.b3")
    for f in w1_dma(a, 3): f()

CX, CSK, CACC, CB, CT, CA = 16, 32, 48, 80, 112, 128
def conv_aload(a):
    a.I("v_and_b32 v8, 15, v2")
    a.I("v_lshrrev_b32 v9, 4, v2")
    a.I("v_and_b32 v10, 1, v2")
    a.I("v_add_u32 v11, v8, v10")
    a.I("v_mul_u32_u24 v10, 0x%x, v10" % KCS)
    a.I("v_lshl_add_u32 v10, v9, 4, v10")
    a.I("v_lshlrev_b32 v11, 1, v11")
    a.I("v_sub_u32 v10, v10, v11")
    a.I("s_lshr_b32 s12, s3, 1")
    a.I("s_mul_i32 s13, s12, %d" % (2 * KCS))
    a.I("s_and_b32 s14, s3, 1")
    a.I("s_lshl_b32 s14, s14, 8")
    a.I("s_sub_u32 s13, s13, s14")
    a.I("s_add_u32 s13, s13, %d" % (KCOP + 4064 - 512 - 192))
    a.I("v_add_u32 v3, s13, v10")
    for xp in range(1, 4): a.I("v_add_u32 v%d, %d, v3" % (3 + xp, (-1024 * xp) & 0xffffffff))
    a.I("s_mul_i32 s13, s12, %d" % USTR)
    a.I("s_sub_u32 s13, s13, s14")
    a.I("s_add_u32 s13, s13, %d" % (UB + 480 - 192))
    a.I("v_lshlrev_b32 v7, 5, v8")
    a.I("v_lshl_add_u32 v7, v9, 4, v7")
    a.I("v_add_u32 v7, s13, v7")
    for rp in range(4):
        for x in range(8):
            r = CA + 4 * (8 * rp + x); o = (512 * (1 - (x & 1)) + 64 * (3 - rp)) // 4
            a.ds("ds_read2_b32 v[%d:%d], v%d offset0:%d offset1:%d" % (r, r + 1, 3 + (x >> 1), o, o + 1), "A")
            a.ds("ds_read2_b32 v[%d:%d], v%d offset0:%d offset1:%d" % (r + 2, r + 3, 3 + (x >> 1), o + 2, o + 3), "A")

def conv(a, lay, fill=()):
    tg = "c%d" % lay
    ST = ST0 if lay == 1 else ST2
    XO = X1 if lay == 1 else X3
    SL = CACC
    SR = CACC + 16
    a.I("v_lshlrev_b32 v8, 4, v2")
    a.I("s_mul_i32 s13, s3, 4224")
    a.I("s_add_u32 s13, s13, %d" % STT)
    a.I("v_and_b32 v1, 3, v2")
    a.I("v_mul_u32_u24 v9, 1056, v1")
    a.I("v_lshrrev_b32 v10, 2, v2")
    a.I("v_lshl_add_u32 v9, v10, 4, v9")
    a.I("v_add_u32 v9, s13, v9")
    a.I("v_lshlrev_b32 v14, 16, s%d" % S_DSK)
    a.I("v_mov_b32 v15, 0xffff0000")
    a.I("v_and_b32 v15, s%d, v15" % S_DSK)
    if lay == 1:
        a.I("s_lshl_b32 s67, s3, 12")
        a.I("s_add_u32 s67, s67, 0x%x" % ST)
        sld = ["buffer_load_dwordx4 %s, v8, %s, s67 offen offset:%d sc1" % (rr(SL + 4 * i), WS, 1024 * i) for i in range(4)]
        a.I("v_add_u32 v10, s13, v8")
        a.I("v_lshlrev_b32 v11, 4, v0")
        a.I("v_add_u32 v11, %d, v11" % (UB + 512))
        uoff = [0, USTR]
        a.I("v_lshrrev_b32 v12, 5, v0")
        a.I("v_lshlrev_b32 v12, 10, v12")
        a.I("v_bfe_u32 v1, v0, 1, 4")
        a.I("v_lshl_add_u32 v12, v1, 4, v12")
        a.I("v_and_b32 v1, 1, v0")
        a.I("v_lshl_add_u32 v12, v1, 9, v12")
        a.I("v_add_u32 v12, %d, v12" % YB)
        yoff = [0, 16384]
        addr_xstore1(a, 13, 1)
        a.I("s_mov_b32 s68, 0x%x" % XO)
        a.I("s_mov_b32 s69, 0x%x" % XO)
        soff = [0, 64]
        dv = [14, 15]
        a.vwait("xcol")
        for i in range(8):
            a.I("v_lshlrev_b32 v%d, 16, v%d" % (CX + i, XC + i))
            a.I("v_and_b32 v%d, 0xffff0000, v%d" % (CX + 8 + i, XC + i))
    else:
        a.I("s_lshl_b32 s67, s3, 11")
        a.I("s_add_u32 s67, s67, 0x%x" % ST)
        a.I("s_add_u32 s31, s67, 8192")
        sld = ["buffer_load_dwordx4 %s, v8, %s, s%d offen offset:%d sc1" % (rr(SL + 4 * i), WS, 67 if i < 2 else 31, 1024 * (i & 1)) for i in range(4)]
        a.I("v_and_b32 v%d, 1, v1" % CT)
        a.I("v_lshrrev_b32 v%d, 1, v1" % (CT + 1))
        a.I("v_lshl_add_u32 v10, v10, 1, v%d" % CT)
        a.I("v_lshl_add_u32 v10, v10, 4, s13")
        a.I("v_lshrrev_b32 v%d, 2, v0" % (CT + 2))
        a.I("v_mul_u32_u24 v11, 0x%x, v%d" % (USTR, CT + 1))
        a.I("v_lshl_add_u32 v11, v%d, 5, v11" % (CT + 2))
        a.I("v_lshl_add_u32 v11, v%d, 4, v11" % CT)
        a.I("v_add_u32 v11, %d, v11" % (UB + 512))
        uoff = [0, 2048]
        a.I("v_lshlrev_b32 v12, 14, v%d" % (CT + 1))
        a.I("v_lshrrev_b32 v%d, 4, v%d" % (CT + 3, CT + 2))
        a.I("v_lshl_add_u32 v12, v%d, 10, v12" % (CT + 3))
        a.I("v_and_b32 v%d, 15, v%d" % (CT + 3, CT + 2))
        a.I("v_lshl_add_u32 v12, v%d, 4, v12" % (CT + 3))
        a.I("v_lshl_add_u32 v12, v%d, 9, v12" % CT)
        a.I("v_add_u32 v12, %d, v12" % YB)
        yoff = [0, 4096]
        a.I("v_lshrrev_b32 v%d, 1, v%d" % (CT + 3, CT + 2))
        a.I("v_mul_u32_u24 v13, 0x%x, v%d" % (XTB, CT + 3))
        a.I("v_lshl_add_u32 v13, v%d, 6, v13" % (CT + 1))
        a.I("v_and_b32 v%d, 1, v%d" % (CT + 3, CT + 2))
        a.I("v_lshl_add_u32 v13, v%d, 5, v13" % (CT + 3))
        a.I("v_lshl_add_u32 v13, v%d, 4, v13" % CT)
        a.I("s_lshl_b32 s12, s%d, 7" % S_C)
        a.I("s_add_u32 s68, s12, 0x%x" % XO)
        a.I("s_add_u32 s69, s12, 0x%x" % (XO + 32 * XTB))
        soff = [0, 0]
        a.I("v_cmp_eq_u32 vcc, 1, v%d" % (CT + 1))
        a.I("v_cndmask_b32 v14, v14, v15, vcc")
        dv = [14, 14]
        a.I("v_mul_u32_u24 v15, 0x%x, v%d" % (X2T, CT + 2))
        a.I("v_lshl_add_u32 v15, v1, 4, v15")
        a.I("s_lshl_b32 s12, s%d, 6" % S_C)
        a.I("s_add_u32 s28, s12, 0x%x" % X2)
        a.I("s_add_u32 s29, s12, 0x%x" % (X2 + 64 * X2T))
        xld = ["buffer_load_dwordx4 %s, v15, %s, s%d offen sc1" % (rr(CT + 8 + 4 * e), WS, 28 + e) for e in range(2)]
        a.vwait()
        a.stamp(tg + ".drain")
        for l in xld: a.vm(l, "x2")
        a.vwait("x2")
        chk = ["v_max_u32 v1, v%d, v%d" % (CT + 8, CT + 12), "v_cmp_eq_u32 vcc, -1, v1"]
        for l in chk: a.I(l)
        a.retry(tg + "x", xld, chk)
        a.stamp(tg + ".x")
        for e in range(2):
            for q in range(4):
                a.I("v_lshlrev_b32 v%d, 16, v%d" % (CX + 8 * e + 2 * q, CT + 8 + 4 * e + q))
                a.I("v_and_b32 v%d, 0xffff0000, v%d" % (CX + 8 * e + 2 * q + 1, CT + 8 + 4 * e + q))
    for l in sld: a.vm(l, "st")
    a.vwait("st")
    chk = []
    for i in range(4):
        chk.append("v_cmp_ne_u64 %s, s[10:11], v[%d:%d]" % ("vcc" if i == 0 else sp(18 + 2 * i), SL + 4 * i + 2, SL + 4 * i + 3))
    chk += ["s_or_b64 s[20:21], s[20:21], s[22:23]", "s_or_b64 vcc, vcc, s[24:25]", "s_or_b64 vcc, vcc, s[20:21]"]
    for l in chk: a.I(l)
    a.retry(tg + "s", sld, chk)
    a.stamp(tg + ".st")
    for i in range(4):
        r = SL + 4 * i
        a.I("v_and_b32 v%d, 0xffff0000, v%d" % (r + 2, r))
        a.I("v_and_b32 v%d, 0xffff0000, v%d" % (r + 3, r + 1))
        a.I("v_rcp_f32 v%d, v%d" % (r + 2, r + 2))
        a.I("v_rcp_f32 v%d, v%d" % (r + 3, r + 3))
        a.I("v_lshlrev_b32 v%d, 16, v%d" % (r, r))
        a.I("v_lshlrev_b32 v%d, 16, v%d" % (r + 1, r + 1))
        a.ds("ds_write_b128 v9, %s offset:%d" % (rr(r), 256 * i))
    for e in range(1 if lay == 1 else 2):
        for i in range(4):
            a.ds("ds_read_b128 %s, v10 offset:%d" % (rr(SR + 16 * e + 4 * i), 1056 * i + 512 * e), "sr%d" % e)
    for e in range(2):
        a.lwait("sr%d" % e)
        S = SR + (16 * e if lay == 2 else 0)
        T = SL
        for q in range(4):
            a.I("v_pk_add_f32 v[%d:%d], v[%d:%d], v[%d:%d] neg_lo:[0,1] neg_hi:[0,1]" % (T + 2 * q, T + 2 * q + 1, CX + 8 * e + 2 * q, CX + 8 * e + 2 * q + 1, S + 4 * q, S + 4 * q + 1))
        for q in range(4): bf_round_pair(a, T + 2 * q, T + 2 * q + 1)
        for q in range(4):
            a.I("v_pk_mul_f32 v[%d:%d], v[%d:%d], v[%d:%d]" % (T + 2 * q, T + 2 * q + 1, T + 2 * q, T + 2 * q + 1, S + 4 * q + 2, S + 4 * q + 3))
        for q in range(4):
            a.I("v_cvt_pk_bf16_f32 v%d, v%d, v%d" % (CT + 4 * e + q, T + 2 * q, T + 2 * q + 1))
        a.ds("ds_write_b128 v11, %s offset:%d" % (rr(CT + 4 * e), uoff[e]))
    a.barrier()
    a.stamp(tg + ".u")
    def bload(rp, y):
        return lambda: a.ds("ds_read_b128 %s, v7 offset:%d" % (rr(CB + 4 * y), 512 * y + 64 * (3 - rp)), "B%d_%d" % (rp, y))
    for y in range(8): bload(0, y)()
    sk = []
    for e in range(2):
        for q in range(4):
            d = CSK + 8 * e + 2 * q
            sk += ["v_lshlrev_b32 v%d, 16, v%d" % (d, CT + 4 * e + q), "v_and_b32 v%d, 0xffff0000, v%d" % (d + 1, CT + 4 * e + q),
                   "v_mul_f32 v%d, v%d, v%d" % (d, d, dv[e]), "v_mul_f32 v%d, v%d, v%d" % (d + 1, d + 1, dv[e]),
                   "v_cvt_pk_bf16_f32 v%d, v%d, v%d" % (d, d, d + 1), "v_and_b32 v%d, 0xffff0000, v%d" % (d + 1, d),
                   "v_lshlrev_b32 v%d, 16, v%d" % (d, d)]
    fill = list(fill)
    ex = []
    while sk or fill:
        if fill: ex.append(fill.pop(0))
        if sk: ex.append(sk.pop(0))
    touched = set()
    for rp in range(4):
        for y in range(8):
            a.lwait("B%d_%d" % (rp, y))
            for x in range(8 - y):
                t = x + y; acc = CACC + 4 * t
                c = rr(acc) if t in touched else "0"
                touched.add(t)
                a.I("v_mfma_f32_16x16x32_bf16 %s, %s, %s, %s" % (rr(acc), rr(CA + 4 * (8 * rp + x)), rr(CB + 4 * y), c))
                if ex:
                    f = ex.pop(0); f() if callable(f) else a.I(f)
            if rp < 3: bload(rp + 1, y)()
    for f in ex: f() if callable(f) else a.I(f)
    a.stamp(tg + ".mm")
    a.I("s_lshl_b32 s12, s3, 13")
    a.I("s_add_u32 s12, s12, %d" % YB)
    a.I("v_add_u32 v8, s12, v8")
    for t in range(8):
        a.ds("ds_write_b128 v8, %s offset:%d" % (rr(CACC + 4 * t), 1024 * t))
    a.barrier()
    Y = CA
    for e in range(2):
        for h in range(2):
            a.ds("ds_read_b128 %s, v12 offset:%d" % (rr(Y + 16 * e + 8 * h), yoff[e] + 8192 * h), "y%d" % e)
            a.ds("ds_read_b128 %s, v12 offset:%d" % (rr(Y + 16 * e + 8 * h + 4), yoff[e] + 8192 * h + 256), "y%d" % e)
    a.vwait("pfB")
    for e in range(2):
        a.lwait("y%d" % e)
        y = Y + 16 * e
        pk = lambda d, x, z: a.I("v_pk_add_f32 v[%d:%d], v[%d:%d], v[%d:%d]" % (d, d + 1, x, x + 1, z, z + 1))
        for q in range(4): pk(y + 2 * q, y + 2 * q, y + 8 + 2 * q)
        for q in range(4): bf_round_pair(a, y + 2 * q, y + 2 * q + 1)
        for q in range(4): pk(y + 2 * q, y + 2 * q, CSK + 8 * e + 2 * q)
        for q in range(4): bf_round_pair(a, y + 2 * q, y + 2 * q + 1)
        for q in range(4): pk(y + 2 * q, y + 2 * q, CX + 8 * e + 2 * q)
        for q in range(4): a.I("v_cvt_pk_bf16_f32 v%d, v%d, v%d" % (y + 8 + q, y + 2 * q, y + 2 * q + 1))
        a.I("v_min_u32 v%d, -2, v%d" % (y + 8, y + 8))
        a.vm("buffer_store_dwordx4 %s, v13, %s, s%d offen offset:%d sc1" % (rr(y + 8), WS, 68 + e, soff[e]), "xst")
    a.stamp(tg + ".out")

def w2_loads(a):
    th = []
    def setup():
        a.I("s_mul_i32 s12, s%d, %d" % (S_TN2, 4 * ATS))
        a.I("s_add_u32 s12, s12, 0x%x" % W2F)
        a.I("v_lshl_add_u32 v3, v2, 4, s12")
        for b in range(1, 4): a.I("v_add_u32 v%d, 0x%x, v3" % (3 + b, b * ATS))
    th.append(setup)
    for s in range(14):
        for b in range(4):
            th.append(lambda s=s, b=b: a.vm("buffer_load_dwordx4 %s, v%d, %s, s%d offen sc1" % (rr(16 * s + 4 * b, 4, "a"), 3 + b, WS, SOFF + s), "w2"))
    return th

def w1_prep(a):
    a.I("v_lshrrev_b32 v8, 2, v2")
    a.I("v_mul_u32_u24 v8, 224, v8")
    a.I("v_and_b32 v9, 3, v2")
    a.I("v_lshl_add_u32 v8, v9, 3, v8")
    a.I("s_mul_i32 s12, s3, 7168")
    a.I("s_and_b32 s13, s%d, 1" % S_TN1)
    a.I("s_lshl_b32 s14, s13, 5")
    a.I("s_add_u32 s14, s14, s12")
    a.I("v_add_u32 v9, s14, v8")
    a.I("s_cmp_eq_u32 s13, 0")
    a.I("s_cselect_b32 s14, 192, 0")
    a.I("s_add_u32 s14, s14, s12")
    a.I("v_add_u32 v10, s14, v8")
    a.I("v_lshl_add_u32 v11, v2, 4, s12")
    a.I("v_lshrrev_b32 v12, 4, v2")
    a.I("s_mul_i32 s15, s%d, 224" % S_TN1)
    a.I("s_sub_u32 s15, s15, s12")
    a.I("s_add_u32 s14, s14, s15")
    a.I("v_lshl_add_u32 v13, v12, 3, s14")
    a.I("s_lshl_b32 s14, s13, 5")
    a.I("s_add_u32 s14, s14, s15")
    a.I("s_add_u32 s14, s14, s12")
    a.I("v_lshl_add_u32 v12, v12, 3, s14")
    BB = 200
    for ft in range(7):
        a.vm("global_load_dwordx2 v[%d:%d], v%d, %s offset:%d" % (BB + 2 * ft, BB + 2 * ft + 1, 12 if ft < 6 else 13, sp(P_B1), 32 * ft if ft < 6 else 0), "b1")
    for r in range(4): a.I("v_mov_b32 v%d, 0x3f803f80" % (16 + r))
    a.vwait("w1b3")
    ACC = 20; FR = 48
    for blk in range(4):
        if blk == 2:
            for r in (9, 10, 11): a.I("v_add_u32 v%d, %d, v%d" % (r, 57344, r))
        o = 28672 * (blk & 1)
        R = FR + 28 * blk
        for ft in range(7):
            for n in range(2):
                a.ds("ds_read_b64_tr_b16 v[%d:%d], v%d offset:%d" % (R + 4 * ft + 2 * n, R + 4 * ft + 2 * n + 1, 9 if ft < 6 else 10, o + (32 * ft if ft < 6 else 0) + 3584 * n), "t%d" % blk)
        a.lwait("t%d" % blk)
        for ft in range(7):
            a.ds("ds_write_b128 v11, %s offset:%d" % (rr(R + 4 * ft), o + 1024 * ft))
            a.I("v_mfma_f32_16x16x32_bf16 %s, %s, v[16:19], %s" % (rr(ACC + 4 * ft), rr(R + 4 * ft), "0" if blk == 0 else rr(ACC + 4 * ft)))
    a.I("v_lshrrev_b32 v12, 4, v2")
    a.I("s_mul_i32 s12, s3, 448")
    a.I("s_add_u32 s12, s12, %d" % CSP)
    a.I("v_lshl_add_u32 v13, v12, 4, s12")
    a.I("v_lshlrev_b32 v12, 4, v12")
    a.I("v_add_u32 v14, %d, v12" % CSP)
    a.I("s_mov_b32 exec_lo, 0x00010001")
    a.I("s_mov_b32 exec_hi, 0x00010001")
    for ft in range(7): a.ds("ds_write_b128 v13, %s offset:%d" % (rr(ACC + 4 * ft), 64 * ft))
    a.I("s_mov_b64 exec, -1")
    a.barrier()
    for w in range(4):
        for ft in range(7):
            a.ds("ds_read_b128 %s, v14 offset:%d" % (rr(FR + 28 * w + 4 * ft), 448 * w + 64 * ft), "cs%d" % w)
        if w == 1: a.lwait("cs0")
    a.vwait("b1")
    a.I("v_mov_b32 v16, 0x%x" % LOG2E)
    B2 = 164
    for ft in range(7):
        for h in range(2):
            a.I("v_lshlrev_b32 v%d, 16, v%d" % (B2 + 4 * ft + 2 * h, BB + 2 * ft + h))
            a.I("v_and_b32 v%d, 0xffff0000, v%d" % (B2 + 4 * ft + 2 * h + 1, BB + 2 * ft + h))
    for r in range(0, 28, 2):
        a.I("v_pk_mul_f32 v[%d:%d], v[%d:%d], v[16:17] op_sel_hi:[1,0]" % (B2 + r, B2 + r + 1, B2 + r, B2 + r + 1))
    for w in range(1, 4):
        a.lwait("cs%d" % w)
        for r in range(0, 28, 2):
            a.I("v_pk_add_f32 v[%d:%d], v[%d:%d], v[%d:%d]" % (FR + r, FR + r + 1, FR + r, FR + r + 1, FR + 28 * w + r, FR + 28 * w + r + 1))
    for r in range(0, 28, 2):
        a.I("v_pk_mul_f32 v[%d:%d], v[%d:%d], v[16:17] op_sel_hi:[1,0]" % (FR + r, FR + r + 1, FR + r, FR + r + 1))
    a.I("s_lshl_b32 s12, s2, 12")
    a.I("s_lshl_b32 s13, s3, 10")
    a.I("s_add_u32 s12, s12, s13")
    a.I("s_add_u32 s12, s12, 0x%x" % CSV)
    a.I("s_mov_b32 exec_lo, 0x00010001")
    a.I("s_mov_b32 exec_hi, 0x00010001")
    for ft in range(7):
        a.vm("buffer_store_dwordx4 %s, v12, %s, s12 offen offset:%d" % (rr(FR + 4 * ft), WS, 64 * ft), "csv")
        a.vm("buffer_store_dwordx4 %s, v12, %s, s12 offen offset:%d" % (rr(B2 + 4 * ft), WS, 512 + 64 * ft), "csv")
    a.I("s_mov_b64 exec, -1")

def g1(a, lay):
    tg = "g1%d" % lay
    XI = X1 if lay == 1 else X3
    AO = ACT1 if lay == 1 else ACT2
    ACC = 16; SAC = 72; SET = [88, 124]; STG = 160; ONE = 224
    acc = lambda ft, tt: ACC + 4 * (2 * ft + tt)
    a.I("s_lshl_b32 s12, s%d, 2" % S_TM1)
    a.I("s_add_u32 s12, s12, s3")
    a.I("s_mul_i32 s12, s12, %d" % XTB)
    a.I("s_add_u32 s12, s12, 0x%x" % XI)
    a.I("v_lshl_add_u32 v3, v2, 4, s12")
    a.I("s_lshl_b32 s12, s3, 13")
    a.I("s_add_u32 s12, s12, %d" % SB)
    a.I("v_bfe_u32 v11, v2, 4, 1")
    a.I("v_lshlrev_b32 v11, 5, v11")
    a.I("v_lshl_add_u32 v4, v2, 4, s12")
    a.I("v_xor_b32 v4, v4, v11")
    a.I("v_lshrrev_b32 v5, 2, v2")
    a.I("v_lshl_add_u32 v5, v5, 6, s12")
    a.I("v_and_b32 v6, 3, v2")
    a.I("v_lshl_add_u32 v5, v6, 3, v5")
    a.I("v_add_u32 v5, v5, v11")
    a.I("v_xor_b32 v6, 32, v5")
    for cq in range(4):
        a.I("s_add_u32 s12, s3, %d" % cq)
        a.I("s_and_b32 s12, s12, 3")
        a.I("s_mul_i32 s12, s12, 28672")
        a.I("v_lshl_add_u32 v%d, v2, 4, s12" % (7 + cq))
    for r in range(4): a.I("v_mov_b32 v%d, 0x3f803f80" % (ONE + r))
    a.I("s_lshl_b32 s18, s3, 2")
    a.I("s_add_u32 s18, s18, s%d" % S_TN1)
    a.I("s_lshl_b32 s18, s18, 11")
    def gl(k, sreg):
        st = STG + 8 * (k & 7)
        return ["s_add_u32 s%d, s18, %d" % (sreg, 2048 * k), "s_and_b32 s%d, s%d, 0x7fff" % (sreg, sreg),
                "buffer_load_dwordx4 %s, v3, %s, s%d offen sc1" % (rr(st), WS, sreg),
                "buffer_load_dwordx4 %s, v3, %s, s%d offen offset:1024 sc1" % (rr(st + 4), WS, sreg)]
    def G(k):
        l = gl(k, 19)
        return [lambda: (a.I(l[0]), a.I(l[1]), a.vm(l[2], "x%d" % (k >> 1))), lambda: a.vm(l[3], "x%d" % (k >> 1))]
    def chk(c):
        st = STG + 16 * (c & 3)
        return ["v_max3_u32 v11, v%d, v%d, v%d" % (st, st + 4, st + 8), "v_max_u32 v11, v11, v%d" % (st + 12), "v_cmp_eq_u32 vcc, -1, v11"]
    def V(c):
        ck = chk(c)
        after = []
        if c == 0:
            for k in range(2, 8): after += gl(k, 20)
        return [lambda: (a.vwait("x%d" % c), a.I(ck[0])), ck[1], ck[2],
                lambda: a.retry("%sx%d" % (tg, c), gl(2 * c, 20) + gl(2 * c + 1, 20), ck, after)]
    def W(k):
        st = STG + 8 * (k & 7)
        return [lambda n=n: a.ds("ds_write_b128 v4, %s offset:%d" % (rr(st + 4 * n), 2048 * (k & 3) + 1024 * n)) for n in range(2)]
    def R(k):
        S = SET[k & 1]; out = []
        for tt in range(2):
            for n in range(2):
                out.append(lambda tt=tt, n=n: a.ds("ds_read_b64_tr_b16 v[%d:%d], v%d offset:%d" % (S + 4 * tt + 2 * n, S + 4 * tt + 2 * n + 1, 5 + tt, 2048 * (k & 3) + 1024 * n), "r%d" % k))
        for ft in range(7):
            out.append(lambda ft=ft: a.ds("ds_read_b128 %s, v%d offset:%d" % (rr(S + 8 + 4 * ft), 7 + (k >> 2), 7168 * (k & 3) + 1024 * ft), "r%d" % k))
        return out
    def MM(k):
        S = SET[k & 1]; out = []
        for ft in range(7):
            for tt in range(2):
                A_ = acc(ft, tt)
                out.append("v_mfma_f32_16x16x32_bf16 %s, %s, %s, %s" % (rr(A_), rr(S + 8 + 4 * ft), rr(S + 4 * tt), "0" if k == 0 else rr(A_)))
        for tt in range(2):
            A_ = SAC + 8 * tt
            out.append("v_mfma_f32_16x16x32_bf16 %s, %s, %s, %s" % (rr(A_), rr(ONE), rr(S + 4 * tt), "0" if k == 0 else rr(A_)))
            out.append("v_mfma_f32_16x16x32_bf16 %s, %s, %s, %s" % (rr(A_ + 4), rr(S + 4 * tt), rr(S + 4 * tt), "0" if k == 0 else rr(A_ + 4)))
        return out
    run = lambda L: [x() if callable(x) else a.I(x) for x in L]
    a.vwait("xst")
    a.stamp(tg + ".drain")
    for k in range(8): run(G(k))
    run(V(0))
    a.stamp(tg + ".x0")
    run(W(0)); run(R(0)); run(W(1))
    run(G(8)); run(G(9))
    CC = STG
    for k in range(16):
        fl = []
        if k + 1 < 16: fl += R(k + 1)
        if k + 2 < 16:
            if k % 2 == 0: fl += V((k + 2) >> 1)
            fl += W(k + 2)
            if k + 10 < 16: fl += G(k + 10)
        if k == 14:
            def cl():
                a.I("s_lshl_b32 s12, s2, 12"); a.I("s_lshl_b32 s13, s3, 10"); a.I("s_add_u32 s12, s12, s13")
                a.I("s_add_u32 s12, s12, 0x%x" % CSV)
                a.I("v_lshrrev_b32 v11, 4, v2"); a.I("v_lshlrev_b32 v11, 4, v11")
            fl.append(cl)
            for ft in range(7):
                fl.append(lambda ft=ft: a.vm("buffer_load_dwordx4 %s, v11, %s, s12 offen offset:%d sc1" % (rr(CC + 4 * ft), WS, 64 * ft), "cc"))
                fl.append(lambda ft=ft: a.vm("buffer_load_dwordx4 %s, v11, %s, s12 offen offset:%d sc1" % (rr(CC + 28 + 4 * ft), WS, 512 + 64 * ft), "cc"))
        a.lwait("r%d" % k)
        a.sched(MM(k), fl)
    a.stamp(tg + ".mm")
    a.I("v_and_b32 v3, 3, v2")
    a.I("v_bfe_u32 v4, v2, 2, 2")
    a.I("v_lshrrev_b32 v5, 4, v2")
    a.I("v_cmp_eq_u32 s[20:21], v4, v5")
    a.I("v_cmp_eq_u32 s[22:23], 1, v3")
    a.I("v_cmp_eq_u32 s[24:25], 2, v3")
    a.I("v_cmp_eq_u32 s[26:27], 3, v3")
    for tt in range(2):
        g = SAC + 8 * tt + 4
        a.I("v_cndmask_b32 v%d, v%d, v%d, s[22:23]" % (g, g, g + 1))
        a.I("v_cndmask_b32 v%d, v%d, v%d, s[24:25]" % (g, g, g + 2))
        a.I("v_cndmask_b32 v%d, v%d, v%d, s[26:27]" % (g, g, g + 3))
        a.I("v_cndmask_b32 v%d, 0, v%d, s[20:21]" % (g, g))
    for sw in ("v_permlane32_swap_b32", "v_permlane16_swap_b32"):
        for tt in range(2): a.I("v_mov_b32 v%d, v%d" % (SAC + 8 * tt + 5, SAC + 8 * tt + 4))
        for tt in range(2): a.I("%s v%d, v%d" % (sw, SAC + 8 * tt + 4, SAC + 8 * tt + 5))
        for tt in range(2): a.I("v_add_f32 v%d, v%d, v%d" % (SAC + 8 * tt + 4, SAC + 8 * tt + 4, SAC + 8 * tt + 5))
    for tt in range(2): fin_stats(a, SAC + 8 * tt, SAC + 8 * tt + 4, SAC + 8 * tt + 1, SAC + 8 * tt + 2)
    for tt in range(2):
        p = SAC + 8 * tt + 1
        a.I("v_and_b32 v%d, 0xffff0000, v%d" % (13 + 2 * tt, p))
        a.I("v_rcp_f32 v%d, v%d" % (13 + 2 * tt, 13 + 2 * tt))
        a.I("v_lshlrev_b32 v%d, 16, v%d" % (12 + 2 * tt, p))
        a.I("v_mul_f32 v%d, v%d, v%d" % (12 + 2 * tt, 12 + 2 * tt, 13 + 2 * tt))
        a.I("v_mul_f32 v%d, 0x%x, v%d" % (13 + 2 * tt, LOG2E, 13 + 2 * tt))
    LN2 = 0.6931471805599453
    a.I("v_mov_b32 v8, 1.0")
    a.I("v_mov_b32 v10, %s" % f32(LN2))
    a.I("v_mov_b32 v11, %s" % f32(-2 * LN2))
    a.I("s_lshl_b32 s12, s%d, 3" % S_TM1)
    a.I("s_lshl_b32 s13, s3, 1")
    a.I("s_add_u32 s12, s12, s13")
    a.I("s_mul_i32 s12, s12, %d" % ATS)
    a.I("s_mul_i32 s13, s%d, 3584" % S_TN1)
    a.I("s_add_u32 s12, s12, s13")
    a.I("s_add_u32 s12, s12, 0x%x" % AO)
    a.I("s_and_b32 s13, s%d, 1" % S_TN1)
    a.I("s_lshl_b32 s14, s13, 9")
    a.I("s_add_u32 s14, s14, s12")
    a.I("v_lshl_add_u32 v3, v2, 4, s14")
    a.I("v_add_u32 v4, 0x%x, v3" % ATS)
    a.I("s_cmp_eq_u32 s13, 0")
    a.I("s_cselect_b32 s14, 3072, 0")
    a.I("s_add_u32 s14, s14, s12")
    a.I("v_and_b32 v6, 15, v2")
    a.I("v_lshl_add_u32 v6, v6, 4, s14")
    a.I("v_and_b32 v7, 1, v5")
    a.I("v_mul_u32_u24 v7, 0x%x, v7" % ATS)
    a.I("v_lshrrev_b32 v5, 1, v5")
    a.I("v_lshl_add_u32 v5, v5, 8, v6")
    a.I("v_add_u32 v5, v5, v7")
    a.vwait("cc")
    a.stamp(tg + ".st")
    TT = 88; OUT = 136
    def mish(ft, tt, T, o):
        st = 12 + 2 * tt
        for h in range(2):
            A_ = acc(ft, tt) + 2 * h; c = CC + 4 * ft + 2 * h; b = c + 28; H = T + 2 * h
            a.I("v_pk_fma_f32 v[%d:%d], v[%d:%d], v[%d:%d], v[%d:%d] op_sel:[0,0,0] op_sel_hi:[1,0,1] neg_lo:[0,1,0] neg_hi:[0,1,0]" % (H, H + 1, c, c + 1, st, st + 1, b, b + 1))
            a.I("v_pk_fma_f32 v[%d:%d], v[%d:%d], v[%d:%d], v[%d:%d] op_sel:[0,1,0] op_sel_hi:[1,1,1]" % (H, H + 1, A_, A_ + 1, st, st + 1, H, H + 1))
        for e in range(4): a.I("v_exp_f32 v%d, v%d" % (T + 4 + e, T + e))
        for h in range(2):
            W_ = T + 4 + 2 * h
            a.I("v_pk_add_f32 v[%d:%d], v[%d:%d], v[8:9] op_sel_hi:[1,0]" % (W_, W_ + 1, W_, W_ + 1))
            a.I("v_pk_fma_f32 v[%d:%d], v[%d:%d], v[%d:%d], v[8:9] op_sel_hi:[1,1,0]" % (W_, W_ + 1, W_, W_ + 1, W_, W_ + 1))
        for e in range(4): a.I("v_rcp_f32 v%d, v%d" % (T + 4 + e, T + 4 + e))
        for h in range(2):
            W_ = T + 4 + 2 * h; H = T + 2 * h
            a.I("v_pk_fma_f32 v[%d:%d], v[%d:%d], v[10:11], v[10:11] op_sel:[0,1,0] op_sel_hi:[1,1,0]" % (W_, W_ + 1, W_, W_ + 1))
            a.I("v_pk_mul_f32 v[%d:%d], v[%d:%d], v[%d:%d]" % (W_, W_ + 1, W_, W_ + 1, H, H + 1))
            a.I("v_cvt_pk_bf16_f32 v%d, v%d, v%d" % (o + h, W_, W_ + 1))
    n = 0
    for p in range(3):
        for tt in range(2):
            o = OUT + 4 * (n % 4)
            mish(2 * p, tt, TT + 8 * ((2 * n) % 6), o)
            mish(2 * p + 1, tt, TT + 8 * ((2 * n + 1) % 6), o + 2)
            a.I("v_min_u32 v%d, -2, v%d" % (o, o))
            a.vm("buffer_store_dwordx4 %s, v%d, %s, 0 offen offset:%d sc1" % (rr(o), 3 + tt, WS, 1024 * p), "ast")
            n += 1
    o = OUT + 4 * (n % 4)
    mish(6, 0, TT, o); mish(6, 1, TT + 8, o + 2)
    a.I("v_permlane16_swap_b32 v%d, v%d" % (o, o + 2))
    a.I("v_permlane16_swap_b32 v%d, v%d" % (o + 1, o + 3))
    a.I("v_min_u32 v%d, -2, v%d" % (o, o))
    a.vm("buffer_store_dwordx4 %s, v5, %s, 0 offen sc1" % (rr(o), WS), "ast")
    a.stamp(tg + ".out")

def g2(a, lay):
    tg = "g2%d" % lay
    XI = X1 if lay == 1 else X3
    AI = ACT1 if lay == 1 else ACT2
    ACC = 32; BUF = 96; RES = 224; NB = 8
    fr = lambda s, i: BUF + 16 * (s % NB) + 4 * i
    a.I("s_barrier")
    for i in range(4):
        a.I("s_add_u32 s12, s3, %d" % i)
        a.I("s_and_b32 s12, s12, 3")
        a.I("s_mul_i32 s13, s12, 12288")
        a.I("s_add_u32 s13, s13, %d" % SB)
        a.I("v_lshl_add_u32 v%d, v2, 4, s13" % (8 + i))
        if i == 1: a.I("s_mov_b32 s18, s13")
        a.I("s_lshl_b32 s13, s%d, 2" % S_TM2)
        a.I("s_add_u32 s12, s12, s13")
        a.I("s_mul_i32 s12, s12, %d" % ATS)
        a.I("s_add_u32 s12, s12, 0x%x" % AI)
        a.I("v_lshl_add_u32 v%d, v2, 4, s12" % (3 + i))
    a.I("s_lshl_b32 s12, s%d, 1" % S_TM2)
    a.I("s_lshr_b32 s13, s3, 1")
    a.I("s_add_u32 s12, s12, s13")
    a.I("s_mul_i32 s12, s12, %d" % XTB)
    a.I("s_lshl_b32 s13, s%d, 12" % S_TN2)
    a.I("s_add_u32 s12, s12, s13")
    a.I("s_and_b32 s13, s3, 1")
    a.I("s_lshl_b32 s13, s13, 5")
    a.I("s_add_u32 s12, s12, s13")
    a.I("s_add_u32 s12, s12, 0x%x" % XI)
    a.I("v_lshrrev_b32 v7, 1, v2")
    a.I("v_lshl_add_u32 v7, v7, 6, s12")
    a.I("v_and_b32 v12, 1, v2")
    a.I("v_lshl_add_u32 v7, v12, 4, v7")
    a.I("v_lshl_add_u32 v13, v2, 3, s18")
    def gl(s): return ["buffer_load_dwordx4 %s, v%d, %s, s%d offen sc1" % (rr(fr(s, i)), 3 + i, WS, SOFF + s) for i in range(4)]
    def G(s): return [lambda l=l: a.vm(l, "a%d" % s) for l in gl(s)]
    def chk(s): return ["v_max3_u32 v12, v%d, v%d, v%d" % (fr(s, 0), fr(s, 1), fr(s, 2)), "v_max_u32 v12, v12, v%d" % fr(s, 3), "v_cmp_eq_u32 vcc, -1, v12"]
    def V(s):
        ck = chk(s); after = []
        if s == 0:
            for k in range(1, 7): after += gl(k)
        return [lambda: (a.vwait("a%d" % s), a.I(ck[0])), ck[1], ck[2], lambda: a.retry("%sa%d" % (tg, s), gl(s), ck, after)]
    run = lambda L: [x() if callable(x) else a.I(x) for x in L]
    a.vwait()
    a.stamp(tg + ".drain")
    for s in range(7): run(G(s))
    run(V(0))
    a.stamp(tg + ".a0")
    for s in range(14):
        fl = []
        if s + 7 < 14: fl += G(s + 7)
        if s == 7:
            fl += [lambda: a.vm("buffer_load_dwordx4 %s, v7, %s, 0 offen sc1" % (rr(RES), WS), "res"),
                   lambda: a.vm("buffer_load_dwordx4 %s, v7, %s, 0 offen offset:2048 sc1" % (rr(RES + 4), WS), "res")]
        pad = ["s_nop 0"] * 0
        mm = []
        for i in range(4):
            for b in range(4):
                A_ = ACC + 4 * (4 * i + b)
                mm.append("v_mfma_f32_16x16x32_bf16 %s, %s, %s, %s" % (rr(A_), rr(16 * s + 4 * b, 4, "a"), rr(fr(s, i)), "0" if s == 0 else rr(A_)))
        a.sched(mm[:10], fl, per=1)
        fl = V(s + 1) if s + 1 < 14 else []
        if s == 13:
            fl += [lambda: a.vwait("res"),
                   lambda: a.ds("ds_write_b128 v9, %s" % rr(RES)), lambda: a.ds("ds_write_b128 v9, %s offset:1024" % rr(RES + 4))]
            fl += [lambda b=b: a.ds("ds_read_b64_tr_b16 v[%d:%d], v13 offset:%d" % (RES + 8 + 2 * b, RES + 9 + 2 * b, 512 * b), "rt") for b in range(4)]
        a.sched(mm[10:], fl, per=1 if s < 13 else 2)
    a.stamp(tg + ".mm")
    for i in range(1, 4):
        for b in range(4):
            a.ds("ds_write_b128 v%d, %s offset:%d" % (8 + i, rr(ACC + 4 * (4 * i + b)), (i - 1) * 4096 + b * 1024))
    XR = BUF + 64
    a.lwait("rt")
    for r in range(8):
        a.I("v_lshlrev_b32 v%d, 16, v%d" % (XR + 2 * r, RES + 8 + r))
        a.I("v_and_b32 v%d, 0xffff0000, v%d" % (XR + 2 * r + 1, RES + 8 + r))
    a.barrier()
    a.stamp(tg + ".bar")
    for i in range(3):
        for b in range(4):
            a.ds("ds_read_b128 %s, v8 offset:%d" % (rr(BUF + 16 * i + 4 * b), i * 4096 + b * 1024), "p%d" % i)
    pk = lambda d, x, z: a.I("v_pk_add_f32 v[%d:%d], v[%d:%d], v[%d:%d]" % (d, d + 1, x, x + 1, z, z + 1))
    a.I("v_and_b32 v4, 15, v2")
    a.I("v_lshrrev_b32 v5, 4, v2")
    for i in range(3):
        a.lwait("p%d" % i)
        for r in range(0, 16, 2): pk(ACC + r, ACC + r, BUF + 16 * i + r)
    for r in range(0, 16, 2): bf_round_pair(a, ACC + r, ACC + r + 1)
    for r in range(0, 16, 2): pk(ACC + r, ACC + r, XR + r)
    P = ACC + 16
    for r in range(8): a.I("v_cvt_pk_bf16_f32 v%d, v%d, v%d" % (P + r, ACC + 2 * r, ACC + 2 * r + 1))
    if lay == 1:
        a.I("s_mul_i32 s13, s3, 12288")
        a.I("s_add_u32 s13, s13, %d" % SB)
        a.I("v_mul_u32_u24 v6, 136, v4")
        a.I("v_lshl_add_u32 v6, v5, 3, v6")
        a.I("v_add_u32 v6, s13, v6")
        for b in range(4): a.ds("ds_write_b64 v6, v[%d:%d] offset:%d" % (P + 2 * b, P + 2 * b + 1, 32 * b))
        Sg = ACC + 24
        a.I("s_mov_b32 s15, 0x3f803f80")
        for r in range(4): a.I("v_mov_b32 v%d, 0" % (Sg + 4 + r))
        for r in range(8):
            a.I("v_dot2c_f32_bf16 v%d, s15, v%d" % (Sg + 4 + 2 * (r & 1), P + r))
            a.I("v_dot2c_f32_bf16 v%d, v%d, v%d" % (Sg + 5 + 2 * (r & 1), P + r, P + r))
        pk(Sg, Sg + 4, Sg + 6)
        for sw in ("v_permlane32_swap_b32", "v_permlane16_swap_b32"):
            for r in range(2): a.I("v_mov_b32 v%d, v%d" % (Sg + 4 + r, Sg + r))
            for r in range(2): a.I("%s v%d, v%d" % (sw, Sg + r, Sg + 4 + r))
            pk(Sg, Sg, Sg + 4)
        a.I("v_mov_b32 v%d, s10" % (Sg + 2))
        a.I("v_mov_b32 v%d, s11" % (Sg + 3))
        a.I("s_lshl_b32 s12, s%d, 3" % S_TM2)
        a.I("s_add_u32 s12, s12, s%d" % S_TN2)
        a.I("s_lshl_b32 s12, s12, 10")
        a.I("s_lshl_b32 s14, s3, 8")
        a.I("s_add_u32 s12, s12, s14")
        a.I("s_add_u32 s12, s12, 0x%x" % PS2)
        a.I("v_lshlrev_b32 v3, 4, v2")
        a.I("s_mov_b64 exec, 0xffff")
        a.vm("buffer_store_dwordx4 %s, v3, %s, s12 offen sc1" % (rr(Sg), WS), "ps2")
        a.I("s_mov_b64 exec, -1")
        a.stamp(tg + ".ps")
        a.I("v_lshrrev_b32 v6, 1, v5")
        a.I("v_bfe_u32 v7, v2, 2, 2")
        a.I("v_lshl_add_u32 v7, v6, 3, v7")
        a.I("v_mul_u32_u24 v7, 136, v7")
        a.I("v_and_b32 v8, 1, v5")
        a.I("v_lshl_add_u32 v7, v8, 5, v7")
        a.I("v_and_b32 v9, 3, v2")
        a.I("v_lshl_add_u32 v7, v9, 3, v7")
        a.I("v_add_u32 v7, s13, v7")
        for i in range(2):
            for n in range(2):
                a.ds("ds_read_b64_tr_b16 v[%d:%d], v7 offset:%d" % (BUF + 4 * i + 2 * n, BUF + 4 * i + 2 * n + 1, 64 * i + 544 * n), "xt")
        a.I("s_lshl_b32 s12, s%d, 2" % S_TM2)
        a.I("s_add_u32 s12, s12, s3")
        a.I("s_mul_i32 s12, s12, %d" % X2T)
        a.I("s_lshl_b32 s14, s%d, 11" % S_TN2)
        a.I("s_add_u32 s12, s12, s14")
        a.I("s_add_u32 s12, s12, 0x%x" % X2)
        a.I("v_lshlrev_b32 v3, 5, v4")
        a.I("v_lshl_add_u32 v3, v8, 9, v3")
        a.I("v_lshl_add_u32 v3, v6, 4, v3")
        a.lwait("xt")
        for i in range(2):
            a.I("v_min_u32 v%d, -2, v%d" % (BUF + 4 * i, BUF + 4 * i))
            a.vm("buffer_store_dwordx4 %s, v3, %s, s12 offen offset:%d sc1" % (rr(BUF + 4 * i), WS, 1024 * i), "x2st")
        a.stamp(tg + ".out")
    else:
        for b in (0, 2):
            a.I("v_permlane16_swap_b32 v%d, v%d" % (P + 2 * b, P + 2 * b + 2))
            a.I("v_permlane16_swap_b32 v%d, v%d" % (P + 2 * b + 1, P + 2 * b + 3))
        a.I("s_lshl_b32 s12, s%d, 16" % S_TM2)
        a.I("s_lshl_b32 s13, s3, 14")
        a.I("s_add_u32 s12, s12, s13")
        a.I("s_lshl_b32 s13, s%d, 7" % S_TN2)
        a.I("s_add_u32 s12, s12, s13")
        a.I("v_lshl_add_u32 v3, v4, 10, s12")
        a.I("v_and_b32 v8, 1, v5")
        a.I("v_lshl_add_u32 v3, v8, 5, v3")
        a.I("v_lshrrev_b32 v6, 1, v5")
        a.I("v_lshl_add_u32 v3, v6, 4, v3")
        a.vm("global_store_dwordx4 v3, %s, %s" % (rr(P), sp(P_OUT)))
        a.vm("global_store_dwordx4 v3, %s, %s offset:64" % (rr(P + 4), sp(P_OUT)))
        a.stamp(tg + ".out")

def mid(a):
    a.I("v_lshrrev_b32 v16, 3, v2")
    a.I("v_lshlrev_b32 v16, 10, v16")
    a.I("v_and_b32 v17, 7, v2")
    a.I("v_lshl_add_u32 v16, v17, 4, v16")
    a.I("s_lshl_b32 s18, s%d, 13" % S_TM2)
    a.I("s_lshl_b32 s12, s%d, 7" % S_TN2)
    a.I("s_add_u32 s18, s18, s12")
    a.I("s_add_u32 s18, s18, 0x%x" % PS2)
    DR = 32
    for g in range(2):
        for i in range(5): a.I("v_accvgpr_read_b32 v%d, a%d" % (DR + 8 * g + i, KSAVE + 5 * g + i))
    kcopy_addr(a, 60, 61, 62, 63)
    a.barrier()
    kcopy_write(a, "2", DR, 48, 60, 61, 56)
    a.barrier()
    a.I("s_cmp_lg_u32 s3, 0")
    a.I("s_cbranch_scc1 MID_e")
    ld = ["buffer_load_dwordx4 v[20:23], v16, %s, s18 offen sc1" % WS]
    ck = ["v_cmp_ne_u64 vcc, s[10:11], v[22:23]"]
    a.I(ld[0]); a.I("s_waitcnt vmcnt(0)"); a.I(ck[0])
    a.retry("mid", ld, ck)
    for r in range(2):
        a.I("v_add_f32_dpp v%d, v%d, v%d row_ror:8 row_mask:0xf bank_mask:0xf" % (20 + r, 20 + r, 20 + r))
    for sw in ("v_permlane32_swap_b32", "v_permlane16_swap_b32"):
        for r in range(2): a.I("v_mov_b32 v%d, v%d" % (24 + r, 20 + r))
        for r in range(2): a.I("%s v%d, v%d" % (sw, 20 + r, 24 + r))
        a.I("v_pk_add_f32 v[20:21], v[20:21], v[24:25]")
    fin_stats(a, 20, 21, 24, 26)
    a.I("v_mov_b32_dpp v25, v24 quad_perm:[1,0,3,2] row_mask:0xf bank_mask:0xf")
    a.I("v_mov_b32 v26, s10")
    a.I("v_mov_b32 v27, s11")
    a.I("s_lshl_b32 s12, s%d, 3" % S_TM2)
    a.I("s_add_u32 s12, s12, s%d" % S_TN2)
    a.I("s_lshl_b32 s12, s12, 6")
    a.I("s_add_u32 s12, s12, 0x%x" % ST2)
    a.I("v_lshlrev_b32 v16, 3, v2")
    a.I("s_mov_b64 exec, 0x55")
    a.I("buffer_store_dwordx4 v[24:27], v16, %s, s12 offen sc1" % WS)
    a.I("s_mov_b64 exec, -1")
    a.I("s_nop 4")
    a.L("MID_e")
    a.stamp("mid.pub")

def gen(stop=99, stampre=None):
    a = M(stampre)
    ph = 0
    def done():
        nonlocal ph
        ph += 1
        return ph > stop
    while True:
        s0(a)
        conv_aload(a)
        w2 = w2_loads(a)
        if done(): break
        conv(a, 1, w2[:41])
        for f in w2[41:]: f()
        w1_prep(a)
        if done(): break
        g1(a, 1)
        if done(): break
        g2(a, 1)
        if done(): break
        mid(a)
        conv_aload(a)
        conv(a, 2)
        a.I("s_barrier")
        if done(): break
        g1(a, 2)
        if done(): break
        g2(a, 2)
        break
    a.flush()
    a.L("ALL_end")
    a.I("s_endpgm")
    for t in a.tail:
        for l in t: a.lines.append(l)
    return a

def build(path, stop=99, stampre=None, aslist=False):
    ref = open("cdna_kernels/%s.s.ref" % NAME).read()
    hdr = [l for l in ref.split("\n") if l.startswith(";") and "@launch" not in l and "Override" not in l and "grid=ceil" not in l]
    a = gen(stop, stampre)
    kn = NAME + "_kernel"
    out = list(hdr)
    out.append("; @launch grid=(256,1,1) block=(256,1,1) lds=%d" % LDS_TOTAL)
    if stampre: out.append("; stamps: " + " ".join(a.snames))
    out.append('.amdgcn_target "amdgcn-amd-amdhsa--gfx950"')
    out.append(".text")
    a.I("v_accvgpr_write_b32 a255, v255")
    a.I("s_endpgm")
    b, d, info = kernel_text(kn, a)
    print(info)
    out.append(b); out.append('.section .rodata,"a"'); out.append(d)
    open(path, "w").write("\n".join(out))

if __name__ == "__main__":
    build(sys.argv[1] if len(sys.argv) > 1 else "mega.s",
          int(sys.argv[2]) if len(sys.argv) > 2 else 99,
          sys.argv[3] if len(sys.argv) > 3 else None)
```
